```python
import torch

def _softmax(x, axis=-1):
    return torch.softmax(x, dim=axis)

def _gelu(x):
    return torch.nn.functional.gelu(x, approximate='tanh')

def _silu(x):
    return torch.nn.functional.silu(x)

def _sigmoid(x):
    return torch.sigmoid(x)

def _layernorm(x, axis=-1, eps=1e-05):
    m = x.mean(dim=axis, keepdim=True)
    v = x.var(dim=axis, keepdim=True, unbiased=False)
    return (x - m) / torch.sqrt(v + eps)

def _scatter_add(tgt, idx, src, axis=0):
    return tgt.clone().index_add_(axis, idx, src)

def _segment_sum(src, seg, n):
    out = torch.zeros((n,) + src.shape[1:], dtype=src.dtype)
    return out.index_add_(0, seg, src)

def _pad(x, pw):
    flat = tuple((v for pair in reversed(pw) for v in pair))
    return torch.nn.functional.pad(x, flat)
kernel_name = 'adaLN_cond__sliding_block_cached__dense_activation_squared_relu__decode'

def setup_inputs():

    _w = lambda a: (lambda t: t.to(torch.bfloat16) if t.is_floating_point() else t)(torch.as_tensor(a))

    def _A_setup():
        B, Sq, D = (4, 1, 512)
        Hq, Hkv, Sk, Dh = (32, 8, 8192, 128)
        assert Hq % Hkv == 0, (Hq, Hkv)
        return {'x': _w((lambda *s: torch.randn(*s, dtype=torch.bfloat16) * 0.05)(B, Sq, D)), 'k_cache': _w((lambda *s: torch.randn(*s, dtype=torch.bfloat16) * 3.2)(B, Hkv, Sk, Dh)), 'v_cache': _w((lambda *s: torch.randn(*s, dtype=torch.bfloat16) * 0.4)(B, Hkv, Sk, Dh)), 'wq': _w((lambda *s: torch.randn(*s, dtype=torch.bfloat16) * 3.2)(D, Hq * Dh) * D ** (-0.5)), 'wo': _w((lambda *s: torch.randn(*s, dtype=torch.bfloat16) * 0.4)(Hq * Dh, D) * (Hq * Dh) ** (-0.5))}
    _A_in = _A_setup()

    def _B_setup():
        B, S, D, F = (4, 1, 512, 1792)
        return {'x': _w((lambda *s: torch.randn(*s, dtype=torch.bfloat16) * 0.05)(B, S, D)), 'w1': _w((lambda *s: torch.randn(*s, dtype=torch.bfloat16) * 0.05)(D, F)), 'b1': _w((lambda *s: torch.randn(*s, dtype=torch.bfloat16) * 0.4)(F)), 'w2': _w((lambda *s: torch.randn(*s, dtype=torch.bfloat16) * 0.05)(F, D)), 'b2': _w((lambda *s: torch.randn(*s, dtype=torch.bfloat16) * 3.2)(D))}
    _B_in = _B_setup()
    return {'A_x': _A_in['x'], 'A_k_cache': _A_in['k_cache'], 'A_v_cache': _A_in['v_cache'], 'A_wq': _A_in['wq'], 'A_wo': _A_in['wo'], 'B_x': _B_in['x'], 'B_w1': _B_in['w1'], 'B_b1': _B_in['b1'], 'B_w2': _B_in['w2'], 'B_b2': _B_in['b2'], 'c': _w((lambda *s: torch.randn(*s, dtype=torch.bfloat16) * 0.1)(4, 512) * 8.0), 'w_mod': _w((lambda *s: torch.randn(*s, dtype=torch.bfloat16) * 0.1)(512, 6 * 512) * 512 ** (-0.5) * 8.0)}

def reference(A_x, A_k_cache, A_v_cache, A_wq, A_wo, B_x, B_w1, B_b1, B_w2, B_b2, c, w_mod):

    def _A_ref(x, k_cache, v_cache, wq, wo):
        B, Sq, D = x.shape
        Hq, Dh = (32, 128)
        Hkv, Sk = (k_cache.shape[1], k_cache.shape[2])
        W = min(4096, max(256, Sk // 4))
        rep = Hq // Hkv
        q = (lambda x, *d: x.permute(*d))((x @ wq).reshape(B, Sq, Hq, Dh), 0, 2, 1, 3)
        k = (lambda x, n, axis: torch.repeat_interleave(x, n, dim=axis))(k_cache[:, :, Sk - W:, :], rep, axis=1)
        v = (lambda x, n, axis: torch.repeat_interleave(x, n, dim=axis))(v_cache[:, :, Sk - W:, :], rep, axis=1)
        scores = torch.einsum('bhqd,bhkd->bhqk', q, k) * Dh ** (-0.5)
        p = _softmax(scores, axis=-1)
        o = torch.einsum('bhqk,bhkd->bhqd', p, v)
        return (lambda x, *d: x.permute(*d))(o, 0, 2, 1, 3).reshape(B, Sq, Hq * Dh) @ wo

    def _B_ref(x, w1, b1, w2, b2):
        h = torch.einsum('bsd,df->bsf', x, w1) + b1
        zero = torch.zeros_like(h)
        r = torch.where(h > zero, h, zero)
        h = r * r
        out = torch.einsum('bsf,fd->bsd', h, w2) + b2
        return out
    x = A_x
    mod = (_silu(c) @ w_mod).reshape(c.shape[0], 6, 1, -1)
    sa, ca, ga, sb, cb, gb = (mod[:, 0].clone(), mod[:, 1].clone(), mod[:, 2].clone(), mod[:, 3].clone(), mod[:, 4].clone(), mod[:, 5].clone())
    h = _layernorm(x, axis=-1) * (1 + ca) + sa
    x = x + ga * _A_ref(h, A_k_cache, A_v_cache, A_wq, A_wo)
    h = _layernorm(x, axis=-1) * (1 + cb) + sb
    x = x + gb * _B_ref(h, B_w1, B_b1, B_w2, B_b2)
    return x
```

```python
import re
VR = re.compile(r'\bv(\d+)\b|\bv\[(\d+):(\d+)\]')
SR = re.compile(r'\bs(\d+)\b|\bs\[(\d+):(\d+)\]|\b(vcc)\b|\b(exec)\b|\b(m0)\b')
TRANS = ("v_exp_f32", "v_log_f32", "v_rcp_f32", "v_rsq_f32", "v_sqrt_f32", "v_sin_f32", "v_cos_f32")
def vregs(s):
    out = set()
    for m in VR.finditer(s):
        if m.group(1) is not None: out.add(int(m.group(1)))
        else: out.update(range(int(m.group(2)), int(m.group(3)) + 1))
    return out
def sregs(s):
    out = set()
    for m in SR.finditer(s):
        if m.group(1) is not None: out.add(int(m.group(1)))
        elif m.group(2) is not None: out.update(range(int(m.group(2)), int(m.group(3)) + 1))
        elif m.group(4): out.add("vcc")
        elif m.group(5): out.add("exec")
        else: out.add("m0")
    return out
def split_ops(rest):
    ops, depth, cur = [], 0, ""
    for ch in rest:
        if ch == "[": depth += 1
        if ch == "]": depth -= 1
        if ch == "," and depth == 0: ops.append(cur.strip()); cur = ""
        else: cur += ch
    if cur.strip(): ops.append(cur.strip())
    return ops
class I:
    def __init__(s, text):
        s.text = text
        t = text.split(";")[0].strip()
        s.label = t.endswith(":") or t.startswith(".") or not t
        s.op = t.split()[0] if t else ""
        rest = t[len(s.op):]
        ops = split_ops(rest)
        s.ops = ops
        op = s.op
        s.mfma = op.startswith("v_mfma")
        s.valu = op.startswith("v_") and not s.mfma
        s.vmem = op.startswith(("global_", "buffer_", "flat_"))
        s.ds = op.startswith("ds_")
        s.salu = op.startswith("s_")
        s.dpp = "_dpp" in op or "quad_perm" in t or "row_" in t
        s.perml = op.startswith("v_permlane")
        s.trans = op.startswith(TRANS)
        s.vw, s.vr, s.sw, s.sr = set(), set(), set(), set()
        s.srcC = set(); s.srcAB = set(); s.stdata = set()
        if s.label or s.op == "v_nop": return
        if s.mfma:
            s.vw = vregs(ops[0]); s.srcAB = vregs(ops[1]) | vregs(ops[2]); s.srcC = vregs(ops[3]); s.vr = s.srcAB | s.srcC
            s.passes = 8 if "32x32" in op else 4
        elif s.valu:
            if op.startswith("v_cmp"):
                s.sw = sregs(ops[0]); s.vr = vregs(",".join(ops[1:])); s.sr = sregs(",".join(ops[1:]))
            elif op.startswith(("v_readfirstlane", "v_readlane")):
                s.sw = sregs(ops[0]); s.vr = vregs(ops[1]); s.sr = sregs(",".join(ops[2:]))
            elif s.perml and "swap" in op:
                s.vw = vregs(ops[0]) | vregs(ops[1]); s.vr = set(s.vw)
            else:
                s.vw = vregs(ops[0]); s.vr = vregs(",".join(ops[1:])); s.sr = sregs(",".join(ops[1:]))
                if op.startswith(("v_add_co", "v_sub_co", "v_addc_co")): s.sw = sregs(ops[1])
                if op.startswith(("v_fmac", "v_dot2c")) or s.dpp or op.startswith("v_writelane"): s.vr |= s.vw
        elif s.vmem:
            if "_load_lds" in op or " lds" in t:
                s.vr = vregs(rest); s.sr = sregs(rest) | {"m0"}
            elif "_load" in op:
                s.vw = vregs(ops[0]); s.vr = vregs(",".join(ops[1:])); s.sr = sregs(",".join(ops[1:]))
            else:
                s.vr = vregs(rest); s.sr = sregs(rest)
                if "x4" in op or "x3" in op: s.stdata = vregs(ops[1] if op.startswith("global") else ops[0])
        elif s.ds:
            if "read" in op or "rtn" in op or "permute" in op or "swizzle" in op:
                s.vw = vregs(ops[0]); s.vr = vregs(",".join(ops[1:]))
            else: s.vr = vregs(rest)
        elif s.salu:
            if ops and not op.startswith(("s_cmp", "s_cbranch", "s_branch", "s_waitcnt", "s_nop", "s_barrier", "s_sleep", "s_setprio", "s_endpgm", "s_bitcmp")):
                s.sw = sregs(ops[0]); s.sr = sregs(",".join(ops[1:]))
    def states(s):
        if s.label: return 0
        if s.op == "s_nop": return int(s.ops[0], 0) + 1
        return 1
def need(p, c):
    n = 0
    if p.valu:
        if p.vw & c.vr:
            if c.dpp or c.perml or c.mfma: n = max(n, 2)
            if c.op.startswith(("v_readfirstlane", "v_readlane")): n = max(n, 1)
            if p.trans and c.valu and not c.trans: n = max(n, 1)
            if p.trans and (c.vmem or c.ds): n = max(n, 1)
        if p.sw:
            if c.valu and (p.sw & c.sr): n = max(n, 4 if c.op.startswith(("v_readlane", "v_writelane")) else 2)
            if c.vmem and (p.sw & c.sr): n = max(n, 5)
            if c.salu and (p.sw & c.sr): n = max(n, 1)
    if p.mfma:
        big = {4: 8, 8: 12}[p.passes]
        if c.mfma:
            if p.vw & c.srcAB: n = max(n, big)
            if p.vw & c.srcC and p.vw != c.srcC: n = max(n, big - 2)
            if p.vw & c.vw and p.vw != c.srcC: n = max(n, big)
        elif (p.vw & c.vr) or (p.vw & c.vw): n = max(n, big)
        if c.valu and (p.srcC & c.vw): n = max(n, {4: 3, 8: 7}[p.passes])
    if p.stdata and (p.stdata & c.vw): n = max(n, 2)
    if p.salu and "m0" in p.sw and c.vmem and "m0" in c.sr: n = max(n, 1)
    return n
def _req(prog, k, targets):
    c = prog[k]
    req = 0
    stack = [(k - 1, 0, False)]
    seen = {}
    while stack:
        j, dist, via = stack.pop()
        if j < 0 or dist > 14: continue
        p = prog[j]
        if not p.label and not via and p.op in ("s_branch", "s_endpgm", "s_setpc_b64"): continue
        if seen.get(j, 99) <= dist: continue
        seen[j] = dist
        if p.label:
            name = p.text.split(";")[0].strip().rstrip(":")
            for b in targets.get(name, []):
                stack.append((prog.index(b), dist, True))
            stack.append((j - 1, dist, False))
            continue
        req = max(req, need(p, c) - dist)
        stack.append((j - 1, dist + p.states(), False))
    return req
def fix(lines):
    prog = [I(t) for t in lines]
    targets = {}
    for ins in prog:
        if ins.op.startswith(("s_cbranch", "s_branch")):
            targets.setdefault(ins.ops[0], []).append(ins)
    for _ in range(2):
        k = 0
        while k < len(prog):
            c = prog[k]
            if not c.label and c.op != "s_nop":
                req = _req(prog, k, targets)
                while req > 0:
                    n = min(req, 16)
                    prog.insert(k, I(f"s_nop {n-1}")); k += 1; req -= n
            k += 1
    return [i.text for i in prog]
```

```python
import sys, struct
import hz
NAME = "adaLN_cond__sliding_block_cached__dense_activation_squared_relu__decode"

def f32(x): return "0x%08x" % struct.unpack("<I", struct.pack("<f", x))[0]

EPOCH = 0x0
H1   = 0x1000
ML   = 0x4000
H2A  = 0x10000
ML3A = 0x30000
H3A  = 0x40000
ALT  = 0x80000
H4   = 0x100000
H6   = 0x110000
STAMP = 0x180000
SCR = 131072
LDS_BYTES = 163840
LIMIT = 1 << 20

class G:
    def __init__(s, stamps=False, opts=None):
        s.L = []; s.stamps = stamps; s.nst = 0; s.o = opts or {}
        s.uid = 0
    def a(s, t):
        for x in t.strip().split("\n"):
            x = x.strip()
            if x: s.L.append(x)
    def lab(s, p="L"):
        s.uid += 1; return f"{p}_{s.uid}"
    def stamp(s, k):
        if s.stamps: s.a(f"s_memrealtime s[{72+2*k}:{73+2*k}]")
    def dump_stamps(s):
        if not s.stamps: return
        s.a("s_mov_b64 exec, -1\ns_waitcnt lgkmcnt(0)")
        s.a(f"s_lshl_b32 s6, s2, 3\ns_add_u32 s6, s6, s3\ns_lshl_b32 s6, s6, 6\ns_add_u32 s6, s6, {STAMP}")
        s.a("v_mov_b32 v2, s6")
        for k in range(12): s.a(f"v_mov_b32 v{4+k}, s{72+2*k}")
        s.a("s_mov_b64 exec, 1")
        for k in range(3): s.a(f"global_store_dwordx4 v2, v[{4+4*k}:{7+4*k}], s[44:45] offset:{16*k}")
    def tagacc(s, acc, regs, tag):
        s.a(f"v_xor_b32 v{acc}, v{regs[0]}, v{tag}")
        for r in regs[1:]: s.a(f"v_bitop3_b32 v{acc}, v{acc}, v{r}, v{tag} bitop3:0xf6")
    def poll(s, loads, regs, tag, mask, acc, tmp, alt_addrs=(), thr=0, first_issued=False, first_wait=0):
        Lp = s.lab("P"); Lc = s.lab("Pc"); Ld = s.lab("Pd")
        s.a("s_mov_b32 s66, 0")
        if first_issued:
            s.a(f"s_waitcnt vmcnt({first_wait})")
            s.a(f"s_branch {Lc}")
        s.a(f"{Lp}:")
        for l in loads: s.a(l)
        s.a("s_waitcnt vmcnt(0)")
        s.a(f"{Lc}:")
        s.tagacc(acc, regs, tag)
        s.a(f"v_and_b32 v{tmp}, {mask}, v{acc}")
        s.a(f"v_cmp_ne_u32 vcc, 0, v{tmp}")
        s.a(f"s_cbranch_vccz {Ld}")
        s.a(f"s_add_u32 s66, s66, 1\ns_cmp_gt_u32 s66, {LIMIT}\ns_cbranch_scc1 L_end")
        if alt_addrs:
            s.a(f"s_cmp_lt_u32 s66, {thr}\ns_cbranch_scc1 {Lp}")
            s.a(f"v_mov_b32 v{tmp}, {ALT}\nv_cndmask_b32 v{tmp}, 0, v{tmp}, vcc")
            for r in alt_addrs: s.a(f"v_xor_b32 v{r}, v{r}, v{tmp}")
        s.a(f"s_branch {Lp}")
        s.a(f"{Ld}:")
    def dpp(s, op, d, a_, b_, ctl, bank=0xf):
        if b_ is None: s.a(f"{op}_dpp v{d}, v{a_} {ctl} row_mask:0xf bank_mask:{bank:#x}")
        else: s.a(f"{op}_dpp v{d}, v{a_}, v{b_} {ctl} row_mask:0xf bank_mask:{bank:#x}")
    def mfma(s, d, a_, b_, c):
        cs = "0" if c is None else f"v[{c}:{c+3}]"
        s.a(f"v_mfma_f32_16x16x32_bf16 v[{d}:{d+3}], v[{a_}:{a_+3}], v[{b_}:{b_+3}], {cs}")
    def rnd1(s, d, x):
        s.a(f"v_cvt_pk_bf16_f32 v{d}, v{x}, v{x}\nv_and_b32 v{d}, s62, v{d}")
    def unpack(s, lo, hi, p):
        s.a(f"v_lshlrev_b32 v{lo}, 16, v{p}\nv_and_b32 v{hi}, s62, v{p}")
    def rnd2(s, lo, hi, tmp):
        s.a(f"v_cvt_pk_bf16_f32 v{tmp}, v{lo}, v{hi}")
        s.unpack(lo, hi, tmp)
    def frag_from_half(s, F0, F1, p0, p1):
        s.dpp("v_mov_b32", F0+0, p0, None, "quad_perm:[0,0,2,2]")
        s.dpp("v_mov_b32", F0+1, p1, None, "quad_perm:[0,0,2,2]")
        s.dpp("v_mov_b32", F0+2, p0, None, "quad_perm:[1,1,3,3]")
        s.dpp("v_mov_b32", F0+3, p1, None, "quad_perm:[1,1,3,3]")
        for k in range(4): s.dpp("v_mov_b32", F1+k, F0+k, None, "row_ror:8")
    def wave_sum2(s, a_, b_, t):
        for ctl in ("quad_perm:[1,0,3,2]", "quad_perm:[2,3,0,1]", "row_ror:4", "row_ror:8"):
            s.dpp("v_add_f32", a_, a_, a_, ctl); s.dpp("v_add_f32", b_, b_, b_, ctl)
        s.a(f"v_permlane16_swap_b32 v{a_}, v{b_}\nv_add_f32 v{a_}, v{a_}, v{b_}")
        s.a(f"v_mov_b32 v{t}, v{a_}\nv_permlane32_swap_b32 v{a_}, v{t}\nv_add_f32 v{a_}, v{a_}, v{t}")
    def ln_finish(s, mean, var, t):
        s.rnd1(mean, mean)
        s.a(f"v_max_f32 v{var}, 0, v{var}")
        s.rnd1(var, var)
        s.a(f"v_add_f32 v{var}, {f32(1e-5)}, v{var}")
        s.rnd1(var, var)
        s.a(f"v_sqrt_f32 v{var}, v{var}")
        s.rnd1(var, var)
        s.a(f"v_rcp_f32 v{var}, v{var}")

    def prologue(s):
        a = s.a
        s.stamp(0)
        a("""s_cmp_ge_u32 s2, 256
        s_cbranch_scc1 L_exit
        s_load_dwordx16 s[16:31], s[0:1], 0
        s_load_dwordx8 s[32:39], s[0:1], 64
        s_load_dwordx4 s[40:43], s[0:1], 96
        s_load_dwordx2 s[44:45], s[0:1], 112
        v_lshrrev_b32 v1, 6, v0
        s_and_b32 s4, s2, 7
        s_lshr_b32 s5, s2, 3
        v_readfirstlane_b32 s3, v1
        v_and_b32 v1, 63, v0
        v_and_b32 v2, 15, v0
        v_lshrrev_b32 v3, 4, v1
        s_cmp_ge_u32 s5, 16
        s_cbranch_scc1 L_T""")
    def consts(s):
        s.a(f"""s_mov_b32 s60, 0x07060302
        s_mov_b32 s61, 0x05040100
        s_mov_b32 s62, 0xffff0000
        s_mov_b32 s63, 0xffffff00
        s_mov_b32 s64, {f32(1.4426950408889634)}
        s_getreg_b32 s49, hwreg(HW_REG_XCC_ID, 0, 4)""")
    def tags(s, vT8, vT16, vTX):
        s.a(f"""s_add_u32 s46, s48, 1
        s_and_b32 s46, s46, 0xff
        s_lshl_b32 s47, s46, 8
        s_or_b32 s47, s47, s46
        s_lshl_b32 s67, s49, 8
        s_or_b32 s67, s67, s46
        v_mov_b32 v{vT8}, s46
        v_mov_b32 v{vT16}, s47
        v_mov_b32 v{vTX}, s67""")

    def path_A(s):
        a = s.a
        VD, KF, QR, QF, SA, BF, OA = 64, 128, 192, 224, 16, 32, 240
        vT8, vT16, vTX = 248, 249, 250
        a(f"""s_lshr_b32 s6, s5, 2
        s_and_b32 s7, s5, 3
        s_lshl_b32 s8, s6, 3
        s_add_u32 s8, s8, s4
        s_lshl_b32 s8, s8, 21
        s_lshl_b32 s9, s7, 17
        s_add_u32 s8, s8, s9
        s_lshl_b32 s14, s3, 14
        s_add_u32 s8, s8, s14
        s_add_u32 s8, s8, 0x180000
        v_xor_b32 v4, v2, v3
        v_lshlrev_b32 v4, 4, v4
        v_lshl_add_u32 v5, v3, 8, v4
        v_xor_b32 v6, 64, v5
        v_xor_b32 v7, 0x80, v5
        v_xor_b32 v8, 0xc0, v5
        s_mov_b32 m0, s14
        s_waitcnt lgkmcnt(0)
        s_add_u32 s10, s18, s8
        s_addc_u32 s11, s19, 0
        s_load_dword s48, s[44:45], {EPOCH}""")
        s.stamp(1)
        for grp in range(4):
            for n4 in range(4):
                a(f"global_load_lds_dwordx4 v{5+n4}, s[10:11] offset:{n4*1024} nt")
            if grp < 3:
                a("s_add_u32 s10, s10, 0x1000\ns_addc_u32 s11, s11, 0\ns_add_u32 m0, m0, 0x1000")
        a(f"""s_add_u32 s12, s20, s8
        s_addc_u32 s13, s21, 0
        v_lshlrev_b32 v9, 4, v2
        v_lshl_add_u32 v9, v3, 10, v9
        v_mov_b32 v10, 0xff800000
        v_and_b32 v11, 3, v0
        v_lshlrev_b32 v11, 2, v11
        v_add_u32 v11, {SCR}, v11
        ds_write_b32 v11, v10
        s_waitcnt lgkmcnt(0)
        s_barrier""")
        def vloads(g0, g1):
            for grp in range(g0, g1):
                for j in range(4):
                    r = VD + (grp*4 + j)*4
                    a(f"global_load_dwordx4 v[{r}:{r+3}], v9, s[12:13] offset:{j*256} nt")
                if grp < 3: a("s_add_u32 s12, s12, 0x1000\ns_addc_u32 s13, s13, 0")
        vloads(0, 2)
        s.stamp(2)
        s.consts()
        s.tags(vT8, vT16, vTX)
        a(f"""s_lshl_b32 s15, s4, 2
        s_add_u32 s15, s15, s6
        s_lshl_b32 s9, s15, 11
        s_add_u32 s9, s9, {H2A}
        v_and_b32 v12, 3, v0
        v_lshlrev_b32 v12, 9, v12
        v_lshl_add_u32 v12, v3, 5, v12
        v_add_u32 v12, s9, v12
        v_lshl_add_u32 v5, v2, 8, v4
        v_add_u32 v5, s14, v5
        v_xor_b32 v6, 64, v5
        v_xor_b32 v7, 0x80, v5
        v_xor_b32 v8, 0xc0, v5""")
        for k in range(32): a(f"v_mov_b32 v{BF+k}, 0")
        qloads = [f"global_load_dwordx4 v[{QR+(2*st+hf)*4}:{QR+(2*st+hf)*4+3}], v12, s[44:45] offset:{st*128+hf*16} sc1"
                  for st in range(4) for hf in range(2)]
        a("s_waitcnt vmcnt(8)")
        s.stamp(3)
        for l in qloads: a(l)
        vloads(2, 4)
        for t in range(4):
            for st in range(4):
                r = KF + (t*4 + st)*4
                a(f"ds_read_b128 v[{r}:{r+3}], v{5+st} offset:{t*4096}")
        s.poll(qloads, list(range(QR, QR+32)), vTX, "0xff", 13, 14, alt_addrs=(12,), thr=16, first_issued=True, first_wait=8)
        s.stamp(4)
        a("v_and_b32 v14, 0xff00, v13\nv_cmp_ne_u32 s[68:69], 0, v14")
        for k in range(16): a(f"v_perm_b32 v{QF+k}, v{QR+2*k+1}, v{QR+2*k}, s60")
        a("s_waitcnt lgkmcnt(0)")
        for st in range(4):
            for t in range(4):
                s.mfma(SA+4*t, KF+(t*4+st)*4, QF+4*st, None if st == 0 else SA+4*t)
        for t in range(1, 4):
            for r in range(4): s.dpp("v_mov_b32", SA+r, SA+4*t+r, None, "quad_perm:[0,1,2,3]", bank=1 << t)
        X = SA
        s.rnd2(X, X+1, X+4); s.rnd2(X+2, X+3, X+5)
        for r in range(4): a(f"v_mul_f32 v{X+r}, {f32(128 ** -0.5)}, v{X+r}")
        s.rnd2(X, X+1, X+4); s.rnd2(X+2, X+3, X+5)
        a(f"""v_max3_f32 v{X+4}, v{X}, v{X+1}, v{X+2}
        v_max_f32 v{X+4}, v{X+4}, v{X+3}
        ds_max_f32 v11, v{X+4}
        s_waitcnt lgkmcnt(0)
        s_barrier
        ds_read_b32 v{X+6}, v11
        s_waitcnt lgkmcnt(0)""")
        for r in range(4): a(f"v_sub_f32 v{X+r}, v{X+r}, v{X+6}")
        for r in range(4): a(f"v_mul_f32 v{X+r}, s64, v{X+r}")
        for r in range(4): a(f"v_exp_f32 v{X+r}, v{X+r}")
        a(f"""v_add_f32 v{X+4}, v{X}, v{X+1}
        v_add_f32 v{X+5}, v{X+2}, v{X+3}
        v_cvt_pk_bf16_f32 v{X+8}, v{X}, v{X+1}
        v_add_f32 v{X+4}, v{X+4}, v{X+5}
        v_cvt_pk_bf16_f32 v{X+9}, v{X+2}, v{X+3}""")
        s.dpp("v_add_f32", X+4, X+4, X+4, "row_ror:4")
        s.dpp("v_add_f32", X+4, X+4, X+4, "row_ror:8")
        a(f"""v_mov_b32 v{X+5}, v{X+4}
        v_permlane16_swap_b32 v{X+4}, v{X+5}
        v_add_f32 v{X+4}, v{X+4}, v{X+5}
        v_mov_b32 v{X+5}, v{X+4}
        v_permlane32_swap_b32 v{X+4}, v{X+5}
        v_add_f32 v{X+4}, v{X+4}, v{X+5}
        v_and_b32 v13, 3, v0
        v_lshlrev_b32 v13, 5, v13
        s_lshl_b32 s9, s3, 2
        s_add_u32 s9, s9, {SCR+64}
        v_add_u32 v13, s9, v13
        ds_write_b32 v13, v{X+4}""")
        for blk in range(2):
            for jp in range(4):
                for k in range(4):
                    t = 2*blk + (k >> 1)
                    rot = (jp - t) % 4
                    ctl = f"row_ror:{4*rot}" if rot else "quad_perm:[0,1,2,3]"
                    s.dpp("v_mov_b32", BF+(blk*4+jp)*4+k, X+8+(k & 1), None, ctl, bank=1 << jp)
        a("s_waitcnt lgkmcnt(0)\ns_barrier")
        a(f"""s_lshl_b32 s15, s15, 2
        s_add_u32 s15, s15, s7
        s_cmp_lg_u32 s3, 0
        s_cbranch_scc1 L_A_noml
        v_lshrrev_b32 v13, 2, v2
        v_lshlrev_b32 v14, 5, v13
        v_add_u32 v14, {SCR+64}, v14
        v_lshlrev_b32 v13, 2, v13
        v_add_u32 v13, {SCR}, v13
        ds_read_b128 v[{X}:{X+3}], v14
        ds_read_b128 v[{X+4}:{X+7}], v14 offset:16
        ds_read_b32 v{X+8}, v13
        s_lshl_b32 s9, s15, 7
        s_add_u32 s9, s9, {ML3A}
        v_lshlrev_b32 v13, 2, v2
        v_add_u32 v13, s9, v13
        v_and_b32 v14, 1, v0
        v_cmp_ne_u32 vcc, 0, v14
        s_waitcnt lgkmcnt(0)
        v_pk_add_f32 v[{X}:{X+1}], v[{X}:{X+1}], v[{X+2}:{X+3}]
        v_pk_add_f32 v[{X+4}:{X+5}], v[{X+4}:{X+5}], v[{X+6}:{X+7}]
        v_pk_add_f32 v[{X}:{X+1}], v[{X}:{X+1}], v[{X+4}:{X+5}]
        v_add_f32 v{X}, v{X}, v{X+1}
        v_cndmask_b32 v{X}, v{X+8}, v{X}, vcc
        v_and_or_b32 v{X}, v{X}, s63, v{vT8}
        s_mov_b64 exec, 0xffff
        global_store_dword v13, v{X}, s[44:45]
        s_cmp_eq_u64 s[68:69], 0
        s_cbranch_scc1 L_A_ml2
        v_add_u32 v13, {ALT}, v13
        global_store_dword v13, v{X}, s[44:45] sc1
        L_A_ml2:
        s_mov_b64 exec, -1
        L_A_noml:""")
        a(f"""v_and_b32 v13, 3, v0
        v_mul_u32_u24 v13, 288, v13
        v_lshl_add_u32 v13, v3, 6, v13
        v_lshrrev_b32 v14, 2, v2
        v_lshl_add_u32 v13, v14, 4, v13
        v_add_u32 v13, s14, v13""")
        a(f"""v_lshrrev_b32 v14, 7, v0
        v_mul_u32_u24 v14, 288, v14
        v_bfe_u32 v15, v0, 3, 4
        v_lshl_add_u32 v14, v15, 4, v14
        v_bfe_u32 v15, v0, 2, 1
        v_mul_u32_u24 v15, 1216, v15
        v_add_u32 v14, v14, v15
        v_and_b32 v15, 3, v0
        v_lshl_add_u32 v14, v15, 2, v14
        v_add_u32 v15, 0x10000, v14
        s_lshl_b32 s9, s15, 11
        s_add_u32 s9, s9, {H3A}
        v_lshlrev_b32 v12, 2, v0
        v_add_u32 v12, s9, v12""")
        for blk in range(2):
            if blk == 1:
                a("s_waitcnt vmcnt(0)")
                s.stamp(5)
            T = KF + 32*blk
            for jd in range(8):
                for kp in range(4):
                    s0 = VD + (blk*8 + 2*kp+1)*4 + (jd >> 1); s1 = VD + (blk*8 + 2*kp)*4 + (jd >> 1)
                    a(f"v_perm_b32 v{T+jd*4+kp}, v{s0}, v{s1}, s{60 if jd & 1 else 61}")
                if jd >= 1:
                    j2 = jd - 1
                    s.mfma(OA+4*(j2 >> 2), T+j2*4, BF+(blk*4+(j2 & 3))*4, None if (blk == 0 and (j2 & 3) == 0) else OA+4*(j2 >> 2))
            s.mfma(OA+4, T+28, BF+(blk*4+3)*4, OA+4)
        a(f"""ds_write_b128 v13, v[{OA}:{OA+3}]
        ds_write_b128 v13, v[{OA+4}:{OA+7}] offset:1216
        s_waitcnt lgkmcnt(0)
        s_barrier""")
        for w in range(8): a(f"ds_read_b32 v{X+w}, v{14 + (w >> 2)} offset:{(w & 3)*16384}")
        a(f"""s_waitcnt lgkmcnt(4)
        v_pk_add_f32 v[{X}:{X+1}], v[{X}:{X+1}], v[{X+2}:{X+3}]
        s_waitcnt lgkmcnt(0)
        v_pk_add_f32 v[{X+4}:{X+5}], v[{X+4}:{X+5}], v[{X+6}:{X+7}]
        v_pk_add_f32 v[{X}:{X+1}], v[{X}:{X+1}], v[{X+4}:{X+5}]
        v_add_f32 v{X}, v{X}, v{X+1}
        v_and_or_b32 v{X}, v{X}, s63, v{vT8}
        global_store_dword v12, v{X}, s[44:45]
        s_cmp_eq_u64 s[68:69], 0
        s_cbranch_scc1 L_A_pub2
        v_add_u32 v12, {ALT}, v12
        global_store_dword v12, v{X}, s[44:45] sc1
        L_A_pub2:""")
        s.stamp(6)
        a("s_cmp_lg_u32 s3, 0\ns_cbranch_scc1 L_end")
        a(f"""s_lshr_b32 s6, s2, 5
        s_and_b32 s7, s2, 31
        v_and_b32 v4, 3, v1
        v_lshlrev_b32 v4, 2, v4
        v_lshrrev_b32 v5, 5, v1
        v_lshl_add_u32 v4, v5, 1, v4
        v_and_b32 v5, 1, v3
        v_add_u32 v4, v4, v5
        s_lshl_b32 s8, s7, 4
        v_add_u32 v4, s8, v4
        s_lshl_b32 s9, s6, 10
        v_lshlrev_b32 v5, 1, v4
        v_add_u32 v6, s9, v5
        global_load_ushort v20, v6, s[16:17]
        global_load_ushort v21, v5, s[34:35]
        s_lshl_b32 s9, s6, 13
        s_add_u32 s9, s9, {ML}
        v_lshlrev_b32 v7, 2, v4
        v_add_u32 v7, s9, v7
        v_add_u32 v8, {1536*4}, v7""")
        s.poll([f"global_load_dword v22, v7, s[44:45] sc1", f"global_load_dword v23, v8, s[44:45] sc1"],
               [22, 23], vT16, "0xffff", 13, 14)
        a(f"""s_lshl_b32 s9, s6, 2
        s_lshr_b32 s10, s7, 3
        s_add_u32 s9, s9, s10
        s_lshl_b32 s9, s9, 12
        s_add_u32 s9, s9, {H4}
        v_and_b32 v7, 127, v4
        v_lshlrev_b32 v7, 2, v7
        v_lshrrev_b32 v8, 2, v2
        v_lshl_add_u32 v7, v8, 10, v7
        v_add_u32 v7, s9, v7
        s_mul_i32 s9, s2, {56*64}
        s_add_u32 s9, s9, {H6}
        v_lshlrev_b32 v9, 4, v1
        v_add_u32 v9, s9, v9
        v_lshlrev_b32 v20, 16, v20
        v_lshlrev_b32 v21, 16, v21
        v_and_b32 v22, s62, v22
        v_and_b32 v23, s62, v23""")
        for k in range(4): a(f"v_mov_b32 v{44+k}, v{vT8}")
        s.poll([f"global_load_dword v24, v7, s[44:45] sc1", f"global_load_dword v25, v7, s[44:45] offset:512 sc1"],
               [24, 25], vT8, "0xff", 13, 14)
        s.stamp(7)
        a("v_add_f32 v24, v24, v25")
        s.dpp("v_add_f32", 24, 24, 24, "row_ror:4"); s.dpp("v_add_f32", 24, 24, 24, "row_ror:8")
        s.rnd1(24, 24)
        a("v_mul_f32 v24, v22, v24"); s.rnd1(24, 24)
        a("v_add_f32 v24, v20, v24"); s.rnd1(24, 24)
        h6 = [f"global_load_dwordx4 v[{32+4*u}:{35+4*u}], v9, s[44:45] offset:{1024*u} sc1" for u in range(3)]
        h6 += ["s_mov_b32 exec_hi, 0", "global_load_dwordx4 v[44:47], v9, s[44:45] offset:3072 sc1", "s_mov_b32 exec_hi, -1"]
        s.poll(h6, list(range(32, 48)), vT8, "0xff", 13, 14)
        s.stamp(8)
        a("""v_pk_add_f32 v[32:33], v[32:33], v[36:37]
        v_pk_add_f32 v[34:35], v[34:35], v[38:39]
        v_pk_add_f32 v[40:41], v[40:41], v[44:45]
        v_pk_add_f32 v[42:43], v[42:43], v[46:47]
        v_pk_add_f32 v[32:33], v[32:33], v[40:41]
        v_pk_add_f32 v[34:35], v[34:35], v[42:43]
        v_permlane32_swap_b32 v32, v34
        v_permlane32_swap_b32 v33, v35
        v_pk_add_f32 v[32:33], v[32:33], v[34:35]
        v_permlane16_swap_b32 v32, v33
        v_add_f32 v32, v32, v33""")
        s.dpp("v_add_f32", 32, 32, 32, "row_ror:4"); s.dpp("v_add_f32", 32, 32, 32, "row_ror:8")
        s.rnd1(32, 32)
        a("v_add_f32 v32, v32, v21"); s.rnd1(32, 32)
        a("v_mul_f32 v32, v23, v32"); s.rnd1(32, 32)
        a("v_add_f32 v32, v24, v32\nv_cvt_pk_bf16_f32 v32, v32, v32")
        a("s_mov_b32 s8, 0x000f000f\ns_mov_b32 s9, 0x000f000f\ns_mov_b64 exec, s[8:9]")
        a("global_store_short v6, v32, s[40:41]")
        s.stamp(9)
        a("s_branch L_end")

    def dma64(s, vbase, tmp, sptr, stride, lds_off):
        s.a(f"s_add_u32 m0, s14, {lds_off}")
        for k in range(4):
            t, rho = k >> 1, k & 1
            d = (32*t + 4*rho)*stride - k*1024
            if d: s.a(f"v_add_u32 v{tmp}, {d}, v{vbase}")
            s.a(f"global_load_lds_dwordx4 v{tmp if d else vbase}, s[{sptr}:{sptr+1}] offset:{k*1024} nt")
    def read64(s, dst, vr0, vr1, lds_off):
        for t in range(2):
            for ct in range(2):
                for rho in range(2):
                    r = dst + (t*2+ct)*4 + 2*rho
                    s.a(f"ds_read_b64_tr_b16 v[{r}:{r+1}], v{vr1 if ct else vr0} offset:{lds_off + t*2048 + rho*1024}")
    def gemv2(s, W, F0, F1, A0):
        s.mfma(A0, W, F0, None); s.mfma(A0+4, W+4, F0, None)
        s.mfma(A0, W+8, F1, A0); s.mfma(A0+4, W+12, F1, A0+4)
    def reduce8(s, vaddr, R):
        for u in range(4): s.a(f"ds_read_b128 v[{R+4*u}:{R+4*u+3}], v{vaddr} offset:{u*512}")
        s.a(f"""s_waitcnt lgkmcnt(2)
        v_pk_add_f32 v[{R}:{R+1}], v[{R}:{R+1}], v[{R+4}:{R+5}]
        v_pk_add_f32 v[{R+2}:{R+3}], v[{R+2}:{R+3}], v[{R+6}:{R+7}]
        s_waitcnt lgkmcnt(0)
        v_pk_add_f32 v[{R+8}:{R+9}], v[{R+8}:{R+9}], v[{R+12}:{R+13}]
        v_pk_add_f32 v[{R+10}:{R+11}], v[{R+10}:{R+11}], v[{R+14}:{R+15}]
        v_pk_add_f32 v[{R}:{R+1}], v[{R}:{R+1}], v[{R+8}:{R+9}]
        v_pk_add_f32 v[{R+2}:{R+3}], v[{R+2}:{R+3}], v[{R+10}:{R+11}]
        v_permlane32_swap_b32 v{R}, v{R+2}
        v_permlane32_swap_b32 v{R+1}, v{R+3}
        v_pk_add_f32 v[{R}:{R+1}], v[{R}:{R+1}], v[{R+2}:{R+3}]""")

    def path_T(s):
        a = s.a
        WM, WQ, WO, W1, W2 = 64, 80, 128, 160, 176
        vT8, vT16, vTX = 248, 249, 250
        F0, F1, AC, R = 96, 100, 104, 32
        SP, SQ, SST, SX2, SHP, SS2 = SCR, SCR+4096, SCR+8192, SCR+8448, SCR+12544, SCR+8320
        a("L_T:")
        a(f"""s_sub_u32 s5, s5, 16
        s_lshl_b32 s14, s3, 14
        v_bfe_u32 v4, v1, 2, 2
        v_lshl_add_u32 v4, v3, 3, v4
        v_lshrrev_b32 v5, 1, v1
        v_xor_b32 v5, v5, v3
        v_and_b32 v5, 1, v5
        v_and_b32 v6, 1, v1
        v_lshlrev_b32 v6, 4, v6
        s_cmp_lt_u32 s5, 4
        s_cselect_b32 s6, 10, 5
        v_lshlrev_b32 v7, s6, v5
        v_add_u32 v7, v7, v6
        v_lshl_add_u32 v6, v5, 5, v6
        s_movk_i32 s7, 6144
        v_mad_u32_u24 v7, v4, s7, v7
        v_lshl_add_u32 v8, v4, 13, v6
        s_movk_i32 s7, 3584
        v_mad_u32_u24 v9, v4, s7, v6""")
        a(f"""s_lshl_b32 s6, s4, 2
        s_add_u32 s6, s6, s5
        s_lshl_b32 s6, s6, 5
        s_lshl_b32 s7, s4, 3
        s_add_u32 s7, s7, s5
        s_lshl_b32 s7, s7, 6
        s_add_u32 s7, s7, {2048 - 256}
        s_cmp_lt_u32 s5, 4
        s_cselect_b32 s15, s6, s7
        s_mul_i32 s8, s3, {64*6144}
        s_add_u32 s8, s8, s15
        s_lshl_b32 s9, s3, 19
        s_lshl_b32 s6, s4, 10
        s_add_u32 s9, s9, s6
        s_lshl_b32 s6, s5, 6
        s_add_u32 s9, s9, s6
        v_lshrrev_b32 v10, 3, v2
        v_lshlrev_b32 v10, 2, v10
        v_add_u32 v10, v10, v3
        v_bfe_u32 v11, v1, 1, 2
        v_and_b32 v12, 1, v1
        v_lshlrev_b32 v13, 4, v10
        v_lshl_add_u32 v13, v12, 3, v13
        v_lshl_add_u32 v13, v11, 10, v13
        s_lshl_b32 s6, s3, 7
        v_add_u32 v13, s6, v13
        s_and_b32 s6, s3, 3
        s_lshl_b32 s6, s6, 10
        v_lshlrev_b32 v14, 4, v1
        v_add_u32 v14, s6, v14
        s_waitcnt lgkmcnt(0)
        s_load_dword s48, s[44:45], {EPOCH}
        global_load_dwordx2 v[16:17], v13, s[36:37]
        global_load_dwordx4 v[20:23], v14, s[16:17]
        s_add_u32 s10, s38, s8
        s_addc_u32 s11, s39, 0
        s_add_u32 s12, s22, s9
        s_addc_u32 s13, s23, 0""")
        s.stamp(1)
        a("s_cmp_ge_u32 s5, 12\ns_cbranch_scc1 L_T_noMdma")
        s.dma64(7, 15, 10, 6144, 0)
        a("L_T_noMdma:")
        s.dma64(8, 15, 12, 8192, 4096)
        s.consts()
        a("""s_mov_b32 s50, 0x22222222
        s_mov_b32 s51, 0x22222222
        s_mov_b32 s52, 0x44444444
        s_mov_b32 s53, 0x44444444
        s_mov_b32 s54, 0x88888888
        s_mov_b32 s55, 0x88888888
        s_mov_b32 s56, 0xaaaaaaaa
        s_mov_b32 s57, 0xaaaaaaaa
        s_mov_b32 s58, 0x00ff00ff
        s_mov_b32 s59, 0x00ff00ff""")
        a(f"""v_lshrrev_b32 v15, 2, v1
        v_and_b32 v18, 3, v1
        v_lshlrev_b32 v18, 3, v18
        v_add_u32 v18, s14, v18
        v_lshl_add_u32 v24, v15, 6, v18
        v_and_b32 v19, 1, v3
        v_lshl_add_u32 v24, v19, 5, v24
        v_xor_b32 v25, 32, v24
        v_lshl_add_u32 v26, v15, 7, v18
        v_bfe_u32 v19, v1, 3, 2
        v_lshl_add_u32 v26, v19, 5, v26
        v_xor_b32 v27, 32, v26
        v_xor_b32 v28, 64, v26
        v_xor_b32 v29, 0x60, v26""")
        a(f"""v_and_b32 v30, 7, v1
        v_lshlrev_b32 v30, 6, v30
        v_lshl_add_u32 v30, v3, 4, v30
        s_lshl_b32 s6, s3, 9
        s_add_u32 s6, s6, {SCR}
        v_add_u32 v30, s6, v30
        v_lshrrev_b32 v15, 5, v1
        v_and_b32 v18, 31, v1
        v_lshlrev_b32 v31, 4, v18
        v_lshl_add_u32 v31, v15, 11, v31
        v_add_u32 v31, {SCR}, v31""")
        a(f"""v_lshrrev_b32 v60, 3, v18
        v_and_b32 v61, 7, v1
        v_lshlrev_b32 v61, 2, v61
        v_lshl_add_u32 v61, v15, 1, v61""")
        a("s_cmp_ge_u32 s5, 12\ns_cbranch_scc1 L_T_q")
        a(f"""v_and_b32 v15, 15, v61
        v_lshlrev_b32 v15, 1, v15
        v_lshl_add_u32 v15, v60, 10, v15
        s_and_b32 s6, s15, 0x3ff
        v_add_u32 v15, s6, v15
        global_load_dword v62, v15, s[16:17]
        s_waitcnt vmcnt(9)""")
        s.unpack(40, 41, 16); s.unpack(42, 43, 17)
        for k in range(4): a(f"v_mul_f32 v{44+k}, s64, v{40+k}")
        for k in range(4): a(f"v_exp_f32 v{44+k}, -v{44+k}")
        for k in range(4): a(f"v_add_f32 v{44+k}, 1.0, v{44+k}")
        for k in range(4): a(f"v_rcp_f32 v{44+k}, v{44+k}")
        for k in range(4): a(f"v_mul_f32 v{40+k}, v{40+k}, v{44+k}")
        a("v_cvt_pk_bf16_f32 v16, v40, v41\nv_cvt_pk_bf16_f32 v17, v42, v43")
        s.frag_from_half(F0, F1, 16, 17)
        for k in range(4): s.unpack(40+2*k, 41+2*k, 20+k)
        a("v_readfirstlane_b32 s6, v40")
        for k in range(8): a(f"v_subrev_f32 v{40+k}, s6, v{40+k}")
        a("v_add_f32 v48, v40, v41\nv_mul_f32 v49, v40, v40\nv_fmac_f32 v49, v41, v41")
        for k in range(2, 8): a(f"v_add_f32 v48, v48, v{40+k}\nv_fmac_f32 v49, v{40+k}, v{40+k}")
        s.wave_sum2(48, 49, 50)
        a(f"""v_readlane_b32 s7, v48, 0
        v_readlane_b32 s8, v48, 16
        v_mov_b32 v50, {f32(1/512)}
        v_mul_f32 v48, s7, v50
        v_mul_f32 v49, s8, v50
        v_fma_f32 v49, -v48, v48, v49
        v_add_f32 v48, s6, v48""")
        s.ln_finish(48, 49, 50)
        a(f"""s_and_b32 s6, s3, 3
        s_lshl_b32 s6, s6, 3
        s_add_u32 s6, s6, {SST}
        v_mov_b32 v50, s6
        ds_write_b64 v50, v[48:49]
        s_waitcnt vmcnt(5)""")
        s.stamp(2)
        s.read64(WM, 24, 25, 0)
        a("s_waitcnt lgkmcnt(0)")
        s.gemv2(WM, F0, F1, AC)
        for k in range(4): a(f"v_cndmask_b32 v{AC+k}, v{AC+k}, v{AC+4+k}, s[56:57]")
        a(f"""s_mov_b64 exec, s[58:59]
        ds_write_b128 v30, v[{AC}:{AC+3}]
        s_mov_b64 exec, -1
        s_waitcnt lgkmcnt(0)
        s_barrier""")
        s.tags(vT8, vT16, vTX)
        a("s_cmp_lg_u32 s3, 0\ns_cbranch_scc1 L_T_q2")
        a(f"v_lshlrev_b32 v50, 3, v60\nv_add_u32 v50, {SST}, v50\nds_read_b64 v[48:49], v50")
        s.reduce8(31, R)
        a(f"v_cvt_pk_bf16_f32 v{R}, v{R}, v{R+1}")
        a("s_cmp_ge_u32 s5, 4\ns_cbranch_scc1 L_T_late")
        s.dpp("v_mov_b32", R+1, R, None, "row_shl:4")
        a("s_waitcnt vmcnt(0)")
        s.unpack(R+2, R+3, R); s.unpack(R+4, R+5, R+1); s.unpack(R+6, R+7, 62)
        a(f"v_add_f32 v{R+4}, 1.0, v{R+4}\nv_add_f32 v{R+5}, 1.0, v{R+5}")
        s.rnd2(R+4, R+5, R+8)
        a(f"v_sub_f32 v{R+6}, v{R+6}, v48\nv_sub_f32 v{R+7}, v{R+7}, v48")
        s.rnd2(R+6, R+7, R+8)
        a(f"v_mul_f32 v{R+6}, v{R+6}, v49\nv_mul_f32 v{R+7}, v{R+7}, v49")
        s.rnd2(R+6, R+7, R+8)
        a(f"v_pk_mul_f32 v[{R+6}:{R+7}], v[{R+6}:{R+7}], v[{R+4}:{R+5}]")
        s.rnd2(R+6, R+7, R+8)
        a(f"v_pk_add_f32 v[{R+6}:{R+7}], v[{R+6}:{R+7}], v[{R+2}:{R+3}]")
        a(f"v_cvt_pk_bf16_f32 v{R}, v{R+6}, v{R+7}")
        a(f"""v_lshrrev_b32 v50, 3, v61
        v_lshlrev_b32 v50, 7, v50
        v_lshl_add_u32 v50, v60, 5, v50
        v_and_b32 v51, 7, v61
        v_lshl_add_u32 v50, v51, 2, v50
        s_lshl_b32 s6, s15, 3
        s_add_u32 s6, s6, {H1}
        v_add_u32 v50, s6, v50
        s_mov_b32 s8, 0x0f0f0f0f
        s_mov_b32 s9, 0x0f0f0f0f
        s_mov_b64 exec, s[8:9]
        s_branch L_T_mst
        L_T_late:
        v_lshlrev_b32 v50, 13, v60
        v_lshl_add_u32 v50, v61, 2, v50
        s_lshl_b32 s6, s15, 1
        s_add_u32 s6, s6, {ML - 4096}
        v_add_u32 v50, s6, v50
        L_T_mst:
        v_lshl_or_b32 v{R+2}, v{R}, 16, v{vT16}
        v_and_or_b32 v{R+3}, v{R}, s62, v{vT16}
        global_store_dwordx2 v50, v[{R+2}:{R+3}], s[44:45] sc1
        s_mov_b64 exec, -1
        s_branch L_T_q2""")
        a("L_T_q:\ns_waitcnt lgkmcnt(0)")
        s.tags(vT8, vT16, vTX)
        a("L_T_q2:")
        s.stamp(3)
        a(f"""v_lshlrev_b32 v13, 7, v10
        v_lshl_add_u32 v13, v11, 5, v13
        v_lshl_add_u32 v13, v12, 4, v13
        s_lshl_b32 s6, s3, 10
        s_add_u32 s6, s6, {H1}
        v_add_u32 v13, s6, v13
        s_waitcnt vmcnt(0)""")
        s.read64(WQ, 24, 25, 4096)
        s.poll([f"global_load_dwordx4 v[16:19], v13, s[44:45] sc1"], [16, 17, 18, 19], vT16, "0xffff", 14, 15)
        s.stamp(4)
        a("v_perm_b32 v16, v17, v16, s60\nv_perm_b32 v17, v19, v18, s60")
        s.frag_from_half(F0, F1, 16, 17)
        a("s_waitcnt lgkmcnt(0)")
        s.gemv2(WQ, F0, F1, AC)
        for k in range(4): a(f"v_cndmask_b32 v{AC+k}, v{AC+k}, v{AC+4+k}, s[56:57]")
        a(f"""s_mov_b64 exec, s[58:59]
        ds_write_b128 v30, v[{AC}:{AC+3}] offset:4096
        s_mov_b64 exec, -1
        s_waitcnt lgkmcnt(0)
        s_barrier
        s_cmp_lg_u32 s3, 1
        s_cbranch_scc1 L_T_q3
        v_add_u32 v50, 4096, v31""")
        s.reduce8(50, R)
        a(f"""v_cvt_pk_bf16_f32 v{R}, v{R}, v{R+1}
        v_lshlrev_b32 v50, 11, v60
        v_lshl_add_u32 v50, v61, 2, v50
        s_lshl_b32 s6, s4, 13
        s_lshl_b32 s7, s5, 7
        s_add_u32 s6, s6, s7
        s_add_u32 s6, s6, {H2A}
        v_add_u32 v50, s6, v50
        v_lshl_or_b32 v{R+2}, v{R}, 16, v{vTX}
        v_and_or_b32 v{R+3}, v{R}, s62, v{vTX}
        global_store_dwordx2 v50, v[{R+2}:{R+3}], s[44:45]
        v_add_u32 v50, {ALT}, v50
        global_store_dwordx2 v50, v[{R+2}:{R+3}], s[44:45] sc1
        L_T_q3:""")
        s.stamp(5)
        a(f"""s_lshr_b32 s70, s5, 3
        s_and_b32 s71, s5, 7
        v_bfe_u32 v15, v1, 1, 2
        v_xor_b32 v15, v15, v3
        v_lshlrev_b32 v15, 5, v15
        v_and_b32 v16, 1, v1
        v_lshl_add_u32 v15, v16, 4, v15
        v_bfe_u32 v16, v1, 3, 2
        v_lshrrev_b32 v17, 5, v1
        v_lshl_add_u32 v18, v16, 3, v17
        v_lshl_add_u32 v18, v18, 10, v15
        v_lshl_add_u32 v19, v17, 3, v16
        v_lshl_add_u32 v19, v19, 10, v15
        s_lshl_b32 s6, s4, 19
        s_lshl_b32 s7, s3, 16
        s_add_u32 s6, s6, s7
        s_lshl_b32 s7, s71, 7
        s_add_u32 s6, s6, s7
        s_add_u32 s10, s24, s6
        s_addc_u32 s11, s25, 0
        s_mul_i32 s15, s4, 7
        s_add_u32 s15, s15, s71
        s_mov_b32 m0, s14
        s_barrier""")
        for t in range(2):
            for q4 in range(4):
                if q4: a(f"v_add_u32 v20, {q4*1024}, v18")
                a(f"global_load_lds_dwordx4 v{20 if q4 else 18}, s[10:11] offset:{q4*1024} nt")
            if t == 0: a("s_add_u32 s10, s10, 0x8000\ns_addc_u32 s11, s11, 0\ns_add_u32 m0, m0, 0x1000")
        a("s_cmp_eq_u32 s71, 7\ns_cbranch_scc1 L_T_noffn_dma")
        a(f"""s_mul_i32 s6, s3, {64*3584}
        s_lshl_b32 s7, s15, 6
        s_add_u32 s6, s6, s7
        s_add_u32 s10, s28, s6
        s_addc_u32 s11, s29, 0""")
        s.dma64(9, 20, 10, 3584, 8192)
        a(f"""s_lshl_b32 s6, s15, 15
        s_lshl_b32 s7, s3, 7
        s_add_u32 s6, s6, s7
        s_add_u32 s10, s32, s6
        s_addc_u32 s11, s33, 0
        s_add_u32 m0, s14, 12288""")
        for q4 in range(4):
            d = (16*(q4 & 1) + 4*(q4 >> 1) - q4)*1024
            if d: a(f"v_add_u32 v20, {d}, v19")
            a(f"global_load_lds_dwordx4 v{20 if d else 19}, s[10:11] offset:{q4*1024} nt")
        a(f"""s_lshr_b32 s6, s3, 2
        s_lshl_b32 s7, s70, 1
        s_add_u32 s6, s6, s7
        s_and_b32 s7, s3, 3
        v_and_b32 v40, 31, v1
        v_lshlrev_b32 v40, 2, v40
        v_lshl_add_u32 v40, v17, 1, v40
        s_lshl_b32 s8, s7, 7
        v_add_u32 v40, s8, v40
        s_lshl_b32 s8, s6, 10
        v_lshl_add_u32 v41, v40, 1, s8
        global_load_dword v200, v41, s[16:17]
        s_lshl_b32 s8, s6, 13
        s_add_u32 s8, s8, {ML}
        v_lshl_add_u32 v41, v40, 2, s8
        s_lshr_b32 s8, s3, 2
        s_lshl_b32 s8, s8, 10
        s_add_u32 s8, s8, {SX2}
        v_lshl_add_u32 v210, v40, 1, s8
        s_lshl_b32 s8, s6, 2
        s_add_u32 s8, s8, s7
        s_lshl_b32 s8, s8, 12
        s_add_u32 s8, s8, {H4}
        v_lshl_add_u32 v211, v1, 4, s8
        v_and_b32 v42, 3, v1
        v_bfe_u32 v43, v1, 2, 1
        v_lshlrev_b32 v44, 3, v10
        v_lshl_add_u32 v44, v42, 1, v44
        s_lshl_b32 s8, s3, 6
        v_add_u32 v44, s8, v44
        v_lshlrev_b32 v212, 10, v43
        v_lshl_add_u32 v212, v44, 1, v212
        v_add_u32 v212, {SX2}, v212
        v_lshlrev_b32 v45, 13, v43
        v_lshl_add_u32 v45, v44, 2, v45
        s_lshl_b32 s8, s70, 14
        s_add_u32 s8, s8, {ML + 2048}
        v_add_u32 v45, s8, v45
        v_lshlrev_b32 v46, 4, v3
        v_lshl_add_u32 v46, v42, 2, v46
        s_lshl_b32 s8, s15, 6
        v_add_u32 v47, s8, v46
        global_load_dword v201, v47, s[30:31]
        v_lshlrev_b32 v213, 1, v46
        v_lshl_add_u32 v213, v43, 7, v213
        v_lshrrev_b32 v47, 3, v2
        v_lshl_add_u32 v213, v47, 10, v213
        v_add_u32 v213, {SHP}, v213
        v_lshlrev_b32 v214, 6, v42
        v_lshl_add_u32 v214, v43, 7, v214
        v_lshl_add_u32 v214, v3, 4, v214
        s_lshl_b32 s8, s3, 8
        s_add_u32 s8, s8, {SHP}
        v_add_u32 v214, s8, v214
        v_lshlrev_b32 v215, 2, v43
        v_add_u32 v215, v215, v42
        v_lshlrev_b32 v215, 4, v215
        v_add_u32 v215, {SS2}, v215""")
        a(f"""v_lshl_add_u32 v216, v43, 5, v42
        s_lshl_b32 s8, s70, 6
        s_lshl_b32 s9, s3, 2
        s_add_u32 s8, s8, s9
        v_add_u32 v216, s8, v216
        v_mul_u32_u24 v216, {56*64}, v216
        v_lshl_add_u32 v216, v3, 4, v216
        s_lshl_b32 s8, s15, 6
        s_add_u32 s8, s8, {H6}
        v_add_u32 v216, s8, v216""")
        s.poll([f"global_load_dwordx2 v[202:203], v41, s[44:45] sc1",
                f"global_load_dwordx2 v[204:205], v45, s[44:45] sc1",
                f"global_load_dwordx2 v[206:207], v45, s[44:45] offset:2048 sc1"],
               [202, 203, 204, 205, 206, 207], vT16, "0xffff", 14, 15)
        for r in range(202, 208): a(f"v_and_b32 v{r}, s62, v{r}")
        a("v_add_f32 v206, 1.0, v206\nv_add_f32 v207, 1.0, v207")
        s.rnd2(206, 207, 14)
        s.unpack(208, 209, 201); s.unpack(198, 199, 200)
        s.read64(W1, 24, 25, 8192)
        for ct in range(4):
            for rho in range(2):
                r = W2 + ct*4 + 2*rho
                a(f"ds_read_b64_tr_b16 v[{r}:{r+1}], v{26+ct} offset:{12288 + rho*2048}")
        a("L_T_noffn_dma:\ns_waitcnt vmcnt(0)")
        for t in range(2):
            for ct in range(4):
                for rho in range(2):
                    r = WO + (t*4+ct)*4 + 2*rho
                    a(f"ds_read_b64_tr_b16 v[{r}:{r+1}], v{26+ct} offset:{t*4096 + rho*2048}")
        a(f"""s_lshl_b32 s6, s4, 4
        s_lshl_b32 s7, s70, 3
        s_add_u32 s6, s6, s7
        v_and_b32 v40, 7, v1
        v_add_u32 v40, s6, v40
        v_lshlrev_b32 v41, 11, v40
        v_lshl_add_u32 v41, v10, 5, v41
        s_lshl_b32 s6, s3, 8
        s_add_u32 s6, s6, {H3A}
        v_add_u32 v41, s6, v41
        s_lshr_b32 s6, s3, 1
        s_lshl_b32 s6, s6, 4
        s_add_u32 s6, s6, {ML3A}
        v_lshl_add_u32 v42, v40, 7, s6""")
        a(f"""v_bfe_u32 v43, v1, 4, 1
        v_lshlrev_b32 v43, 14, v43
        v_lshl_add_u32 v43, v2, 4, v43
        v_lshrrev_b32 v44, 5, v1
        v_lshl_add_u32 v43, v44, 3, v43
        s_lshl_b32 s6, s70, 15
        s_lshr_b32 s7, s71, 1
        s_lshl_b32 s7, s7, 12
        s_add_u32 s6, s6, s7
        s_lshl_b32 s7, s4, 9
        s_add_u32 s6, s6, s7
        s_and_b32 s7, s71, 1
        s_lshl_b32 s7, s7, 8
        s_add_u32 s6, s6, s7
        s_add_u32 s6, s6, {H4}
        v_add_u32 v43, s6, v43
        s_waitcnt lgkmcnt(0)""")
        s.stamp(6)
        D = 48
        s.poll([f"global_load_dwordx4 v[{D}:{D+3}], v41, s[44:45] sc1",
                f"global_load_dwordx4 v[{D+4}:{D+7}], v41, s[44:45] offset:16 sc1",
                f"global_load_dwordx4 v[{D+8}:{D+11}], v42, s[44:45] sc1"],
               list(range(D, D+12)), vT8, "0xff", 14, 15, alt_addrs=(41, 42), thr=256)
        s.stamp(7)
        Mx, Lr = D+8, D+9
        a(f"v_and_b32 v{Mx}, s62, v{Mx}")
        s.dpp("v_max_f32", D+10, Mx, Mx, "quad_perm:[1,0,3,2]")
        s.dpp("v_max_f32", D+10, D+10, D+10, "quad_perm:[2,3,0,1]")
        a(f"""v_sub_f32 v{Mx}, v{Mx}, v{D+10}
        v_mul_f32 v{Mx}, s64, v{Mx}
        v_exp_f32 v{Mx}, v{Mx}
        v_mul_f32 v{Lr}, v{Lr}, v{Mx}""")
        s.dpp("v_add_f32", Lr, Lr, Lr, "quad_perm:[1,0,3,2]")
        s.dpp("v_add_f32", Lr, Lr, Lr, "quad_perm:[2,3,0,1]")
        a(f"v_rcp_f32 v{Lr}, v{Lr}\nv_mul_f32 v{Mx}, v{Mx}, v{Lr}")
        for k in range(8): a(f"v_mul_f32 v{D+k}, v{D+k}, v{Mx}")
        for k in range(8): s.dpp("v_add_f32", D+k, D+k, D+k, "quad_perm:[1,0,3,2]")
        for k in range(8): s.dpp("v_add_f32", D+k, D+k, D+k, "quad_perm:[2,3,0,1]")
        for k in range(4): a(f"v_cvt_pk_bf16_f32 v{F0+k}, v{D+2*k}, v{D+2*k+1}")
        for k in range(4): s.dpp("v_mov_b32", F1+k, F0+k, None, "row_ror:8")
        for ct in range(4): s.mfma(AC+4*ct, WO+ct*4, F0, None)
        for ct in range(4): s.mfma(AC+4*ct, WO+16+ct*4, F1, AC+4*ct)
        def compact4():
            for ct in range(1, 4):
                for k in range(4): a(f"v_cndmask_b32 v{AC+k}, v{AC+k}, v{AC+4*ct+k}, s[{48+2*ct}:{49+2*ct}]")
        compact4()
        a(f"""s_mov_b64 exec, s[58:59]
        ds_write_b128 v30, v[{AC}:{AC+3}]
        s_mov_b64 exec, -1
        s_waitcnt lgkmcnt(0)
        s_barrier
        s_cmp_lg_u32 s3, 0
        s_cbranch_scc1 L_T_f""")
        s.reduce8(31, R+32)
        a(f"""v_and_or_b32 v{R+32}, v{R+32}, s63, v{vT8}
        v_and_or_b32 v{R+33}, v{R+33}, s63, v{vT8}
        global_store_dwordx2 v43, v[{R+32}:{R+33}], s[44:45] sc1
        L_T_f:""")
        s.stamp(8)
        a("s_cmp_eq_u32 s71, 7\ns_cbranch_scc1 L_T_spare")
        s.poll([f"global_load_dwordx4 v[{D+4*u}:{D+4*u+3}], v211, s[44:45] offset:{1024*u} sc1" for u in range(4)],
               list(range(D, D+16)), vT8, "0xff", 14, 15)
        s.stamp(9)
        a(f"""v_pk_add_f32 v[{D}:{D+1}], v[{D}:{D+1}], v[{D+4}:{D+5}]
        v_pk_add_f32 v[{D+2}:{D+3}], v[{D+2}:{D+3}], v[{D+6}:{D+7}]
        v_pk_add_f32 v[{D+8}:{D+9}], v[{D+8}:{D+9}], v[{D+12}:{D+13}]
        v_pk_add_f32 v[{D+10}:{D+11}], v[{D+10}:{D+11}], v[{D+14}:{D+15}]
        v_pk_add_f32 v[{D}:{D+1}], v[{D}:{D+1}], v[{D+8}:{D+9}]
        v_pk_add_f32 v[{D+2}:{D+3}], v[{D+2}:{D+3}], v[{D+10}:{D+11}]
        v_permlane32_swap_b32 v{D}, v{D+2}
        v_permlane32_swap_b32 v{D+1}, v{D+3}
        v_pk_add_f32 v[{D}:{D+1}], v[{D}:{D+1}], v[{D+2}:{D+3}]""")
        s.rnd2(D, D+1, D+2)
        a(f"v_pk_mul_f32 v[{D}:{D+1}], v[{D}:{D+1}], v[202:203]")
        s.rnd2(D, D+1, D+2)
        a(f"v_pk_add_f32 v[{D}:{D+1}], v[{D}:{D+1}], v[198:199]")
        s.rnd2(D, D+1, D+2)
        a(f"""ds_write_b32 v210, v{D+2}
        v_readfirstlane_b32 s6, v{D}
        v_subrev_f32 v{D}, s6, v{D}
        v_subrev_f32 v{D+1}, s6, v{D+1}
        v_add_f32 v{D+4}, v{D}, v{D+1}
        v_mul_f32 v{D+5}, v{D}, v{D}
        v_fmac_f32 v{D+5}, v{D+1}, v{D+1}""")
        s.wave_sum2(D+4, D+5, D+6)
        a(f"""v_mov_b32 v{D+6}, s6
        s_lshl_b32 s7, s3, 4
        s_add_u32 s7, s7, {SS2}
        v_and_b32 v{D+7}, 1, v3
        v_lshlrev_b32 v{D+7}, 2, v{D+7}
        v_add_u32 v{D+7}, s7, v{D+7}
        v_mov_b32 v{D+8}, s7
        ds_write_b32 v{D+7}, v{D+4} offset:4
        ds_write_b32 v{D+8}, v{D+6}
        s_waitcnt lgkmcnt(0)
        s_barrier
        ds_read_b96 v[{D}:{D+2}], v215
        ds_read_b32 v{D+8}, v212
        s_waitcnt lgkmcnt(1)
        v_mul_f32 v{D+4}, {f32(0.25)}, v{D}
        v_fmac_f32 v{D+4}, {f32(1/512)}, v{D+1}""")
        s.dpp("v_add_f32", D+4, D+4, D+4, "quad_perm:[1,0,3,2]")
        s.dpp("v_add_f32", D+4, D+4, D+4, "quad_perm:[2,3,0,1]")
        a(f"""v_sub_f32 v{D}, v{D+4}, v{D}
        v_mul_f32 v{D+1}, -2.0, v{D+1}
        v_fmac_f32 v{D+1}, {f32(128.0)}, v{D}
        v_fmac_f32 v{D+2}, v{D}, v{D+1}""")
        s.dpp("v_add_f32", D+2, D+2, D+2, "quad_perm:[1,0,3,2]")
        s.dpp("v_add_f32", D+2, D+2, D+2, "quad_perm:[2,3,0,1]")
        a(f"v_mul_f32 v{D+5}, {f32(1/512)}, v{D+2}")
        s.ln_finish(D+4, D+5, D+6)
        a("s_waitcnt lgkmcnt(0)")
        s.unpack(D, D+1, D+8)
        a(f"v_sub_f32 v{D}, v{D}, v{D+4}\nv_sub_f32 v{D+1}, v{D+1}, v{D+4}")
        s.rnd2(D, D+1, D+2)
        a(f"v_mul_f32 v{D}, v{D}, v{D+5}\nv_mul_f32 v{D+1}, v{D+1}, v{D+5}")
        s.rnd2(D, D+1, D+2)
        a(f"v_pk_mul_f32 v[{D}:{D+1}], v[{D}:{D+1}], v[206:207]")
        s.rnd2(D, D+1, D+2)
        a(f"v_pk_add_f32 v[{D}:{D+1}], v[{D}:{D+1}], v[204:205]")
        a(f"v_cvt_pk_bf16_f32 v{D+2}, v{D}, v{D+1}")
        for k in range(4): s.dpp("v_mov_b32", F0+k, D+2, None, f"quad_perm:[{k},{k},{k},{k}]")
        for k in range(4): s.dpp("v_mov_b32", F1+k, F0+k, None, "row_ror:8")
        s.gemv2(W1, F0, F1, AC)
        for k in range(4): a(f"v_cndmask_b32 v{AC+k}, v{AC+k}, v{AC+4+k}, s[56:57]")
        a(f"""s_mov_b32 s8, 0x00330033
        s_mov_b32 s9, 0x00330033
        s_mov_b64 exec, s[8:9]
        ds_write_b128 v214, v[{AC}:{AC+3}]
        s_mov_b64 exec, -1
        s_waitcnt lgkmcnt(0)
        s_barrier""")
        for u in range(4): a(f"ds_read_b64 v[{D+2*u}:{D+2*u+1}], v213 offset:{u*256}")
        a(f"""s_waitcnt lgkmcnt(2)
        v_pk_add_f32 v[{D}:{D+1}], v[{D}:{D+1}], v[{D+2}:{D+3}]
        s_waitcnt lgkmcnt(0)
        v_pk_add_f32 v[{D+4}:{D+5}], v[{D+4}:{D+5}], v[{D+6}:{D+7}]
        v_pk_add_f32 v[{D}:{D+1}], v[{D}:{D+1}], v[{D+4}:{D+5}]""")
        s.dpp("v_add_f32", D, D, D, "row_ror:8"); s.dpp("v_add_f32", D+1, D+1, D+1, "row_ror:8")
        s.rnd2(D, D+1, D+2)
        a(f"v_pk_add_f32 v[{D}:{D+1}], v[{D}:{D+1}], v[208:209]")
        s.rnd2(D, D+1, D+2)
        a(f"""v_max_f32 v{D}, 0, v{D}
        v_max_f32 v{D+1}, 0, v{D+1}
        v_pk_mul_f32 v[{D}:{D+1}], v[{D}:{D+1}], v[{D}:{D+1}]
        v_cvt_pk_bf16_f32 v{D+2}, v{D}, v{D+1}""")
        for k in range(4): s.dpp("v_mov_b32", F0+k, D+2, None, f"quad_perm:[{k},{k},{k},{k}]")
        for ct in range(4): s.mfma(AC+4*ct, W2+ct*4, F0, None)
        compact4()
        for k in range(4): a(f"v_and_or_b32 v{AC+k}, v{AC+k}, s63, v{vT8}")
        a(f"""s_mov_b64 exec, s[58:59]
        global_store_dwordx4 v216, v[{AC}:{AC+3}], s[44:45] sc1""")
        s.stamp(10)
        a("s_branch L_end")
        a(f"""L_T_spare:
        s_cmp_lg_u32 s2, 248
        s_cbranch_scc1 L_end
        s_cmp_lg_u32 s3, 0
        s_cbranch_scc1 L_end
        v_lshrrev_b32 v40, 4, v1
        v_lshlrev_b32 v40, 12, v40
        v_and_b32 v41, 7, v1
        v_lshl_add_u32 v40, v41, 9, v40
        v_bfe_u32 v41, v1, 3, 1
        v_lshl_add_u32 v40, v41, 8, v40
        v_add_u32 v40, {H4}, v40
        v_add_u32 v41, 0x8000, v40""")
        s.poll([f"global_load_dwordx4 v[{D}:{D+3}], v40, s[44:45] sc1", f"global_load_dwordx4 v[{D+4}:{D+7}], v41, s[44:45] sc1"],
               list(range(D, D+8)), vT8, "0xff", 14, 15)
        a(f"""s_add_u32 s6, s48, 1
        v_mov_b32 v40, s6
        v_mov_b32 v41, {EPOCH}
        s_mov_b64 exec, 1
        global_store_dword v41, v40, s[44:45] sc1""")

    def build(s):
        s.prologue(); s.path_A(); s.path_T()
        s.a("L_end:")
        s.stamp(11)
        s.dump_stamps()
        s.a("L_exit:\ns_endpgm")
        body = "\n".join(("" if l.endswith(":") else "    ") + l for l in hz.fix(s.L))
        hdr = open("cdna_kernels/" + NAME + ".s.ref").read().split("; Override")[0]
        k = NAME + "_kernel"
        return f"""{hdr}; Generated by dev/gen.py: one fused persistent launch, 128 attention WGs + 128 weight WGs.
; @launch grid=(256,1,1) block=(512,1,1) lds={LDS_BYTES}
.amdgcn_target "amdgcn-amd-amdhsa--gfx950"
.text
.globl {k}
.p2align 8
.type {k},@function
{k}:
{body}
.section .rodata,"a"
.p2align 6
.amdhsa_kernel {k}
  .amdhsa_next_free_vgpr 256
  .amdhsa_next_free_sgpr 102
  .amdhsa_accum_offset 256
  .amdhsa_group_segment_fixed_size 0
  .amdhsa_kernarg_size 120
  .amdhsa_user_sgpr_count 2
  .amdhsa_user_sgpr_kernarg_segment_ptr 1
  .amdhsa_system_sgpr_workgroup_id_x 1
  .amdhsa_float_denorm_mode_32 3
  .amdhsa_float_denorm_mode_16_64 3
.end_amdhsa_kernel
"""
if __name__ == "__main__":
    open("k.s", "w").write(G().build())
    open("k_st.s", "w").write(G(stamps=True).build())
```

```python
import sys, struct
import hz
NAME = "adaLN_cond__sliding_block_cached__dense_activation_squared_relu__decode"

def f32(x): return "0x%08x" % struct.unpack("<I", struct.pack("<f", x))[0]

EPOCH = 0x0
ML   = 0x4000
H2A  = 0x10000
HM   = 0x20000
ML3A = 0x30000
H3A  = 0x40000
ALT  = 0x80000
H4   = 0x100000
H6   = 0x110000
STAMP = 0x180000
SCR = 131072
LDS_BYTES = 163840
LIMIT = 1 << 20
vT8, vT16, vTX = 248, 249, 250

class G:
    def __init__(s, stamps=False, opts=None):
        s.L = []; s.stamps = stamps; s.o = opts or {}
        s.uid = 0; s.ool = []
    def a(s, t):
        for x in t.strip().split("\n"):
            x = x.strip()
            if x: s.L.append(x)
    def lab(s, p="L"):
        s.uid += 1; return f"{p}_{s.uid}"
    def stamp(s, k):
        if s.stamps and not s.o.get("cyc"): s.a(f"s_memrealtime s[{72+2*k}:{73+2*k}]")
    def cy(s, role, k):
        if s.stamps and s.o.get("cyc") == role: s.a(f"s_memtime s[{72+2*k}:{73+2*k}]")
    def dump_dbg(s):
        s.a("s_mov_b64 exec, 1\ns_waitcnt lgkmcnt(0)\nv_mov_b32 v2, 0")
        def amax(slot, k, inv=False):
            if inv: s.a(f"s_not_b32 s6, s{72+2*k}\nv_mov_b32 v4, s6")
            else: s.a(f"v_mov_b32 v4, s{72+2*k}")
            s.a(f"global_atomic_umax v2, v4, s[42:43] offset:{4*slot} sc1\ns_nop 1")
        amax(0, 0, True); amax(1, 0); amax(11, 11)
        s.a("s_cmp_ge_u32 s2, 128\ns_cbranch_scc1 L_dbg_t")
        for slot, k in ((2, 1), (4, 5), (5, 6), (10, 8), (14, 3), (15, 2)): amax(slot, k)
        s.a("s_branch L_exit\nL_dbg_t:\ns_cmp_ge_u32 s2, 192\ns_cbranch_scc1 L_dbg_f")
        for slot, k in ((3, 5), (6, 7), (7, 8), (12, 2)): amax(slot, k)
        s.a("s_branch L_exit\nL_dbg_f:")
        for slot, k in ((8, 9), (9, 10)): amax(slot, k)
        s.a("s_cmp_ge_u32 s2, 224\ns_cbranch_scc1 L_exit")
        amax(13, 3)
    def leak(s):
        k = s.o["leak"]
        s.a(f"""s_cmp_ge_u32 s2, 128
        s_cbranch_scc1 L_exit
        s_cmp_lg_u32 s3, 0
        s_cbranch_scc1 L_exit
        s_cmp_lg_u32 s4, {s.o.get("leakx", "s4")}
        s_cbranch_scc1 L_exit
        s_waitcnt lgkmcnt(0)
        s_sub_u32 s6, s{72+2*k}, s72
        s_min_u32 s6, s6, 20000
        s_lshl_b32 s6, s6, 3
        L_leak:
        s_memrealtime s[8:9]
        s_waitcnt lgkmcnt(0)
        s_sub_u32 s8, s8, s94
        s_cmp_lt_u32 s8, s6
        s_cbranch_scc1 L_leak""")
    def leak2(s):
        lo, hi, k = s.o["leak2"]
        s.a(f"""s_cmp_lt_u32 s2, {lo}
        s_cbranch_scc1 L_exit
        s_cmp_ge_u32 s2, {hi}
        s_cbranch_scc1 L_exit
        s_waitcnt lgkmcnt(0)
        s_cmp_eq_u32 s{72+2*k}, 0
        s_cbranch_scc1 L_exit
        s_sub_u32 s6, s{72+2*k}, s72
        s_min_u32 s6, s6, 20000
        s_lshl_b32 s6, s6, 3
        s_add_u32 s6, s6, 2000
        L_leak:
        s_sleep 4
        s_memrealtime s[8:9]
        s_waitcnt lgkmcnt(0)
        s_sub_u32 s8, s8, s72
        s_cmp_lt_u32 s8, s6
        s_cbranch_scc1 L_leak""")
    def dump_stamps(s):
        if not s.stamps: return
        if "leak2" in s.o: return s.leak2()
        if "leak" in s.o: return s.leak()
        if s.o.get("dbg"): return s.dump_dbg()
        s.a("s_mov_b64 exec, -1\ns_waitcnt lgkmcnt(0)")
        s.a(f"s_lshl_b32 s6, s2, 3\ns_add_u32 s6, s6, s3\ns_lshl_b32 s6, s6, 6\ns_add_u32 s6, s6, {STAMP}")
        s.a("v_mov_b32 v2, s6")
        for k in range(12): s.a(f"v_mov_b32 v{4+k}, s{72+2*k}")
        s.a("s_mov_b64 exec, 1")
        for k in range(3): s.a(f"global_store_dwordx4 v2, v[{4+4*k}:{7+4*k}], s[44:45] offset:{16*k}")
    def tagacc(s, acc, regs, tag):
        s.a(f"v_xor_b32 v{acc}, v{regs[0]}, v{tag}")
        for r in regs[1:]: s.a(f"v_bitop3_b32 v{acc}, v{acc}, v{r}, v{tag} bitop3:0xf6")
    def poll(s, loads, regs, tag, mask, acc, tmp, alt_addrs=(), thr=0, first_issued=False, first_wait=0, masked=False):
        Lp = s.lab("P"); Lq = s.lab("Pq"); Lc = s.lab("Pc"); Ls = s.lab("Ps")
        lim = thr if alt_addrs else LIMIT
        s.a("s_mov_b32 s66, 0")
        if first_issued:
            s.a(f"s_waitcnt vmcnt({first_wait})")
            s.a(f"{Lc}:")
            s.tagacc(acc, regs, tag)
            s.a(f"v_and_b32 v{tmp}, {mask}, v{acc}\nv_cmp_ne_u32 vcc, 0, v{tmp}\ns_cbranch_vccnz {Lp}")
            o = [f"{Lp}:", "s_add_u32 s66, s66, 1", f"s_cmp_gt_u32 s66, {lim}", f"s_cbranch_scc1 {Ls}", f"{Lq}:"] + list(loads) + ["s_waitcnt vmcnt(0)", f"s_branch {Lc}"]
        else:
            if masked: s.a("s_mov_b64 vcc, exec")
            s.a(f"{Lp}:")
            if masked: s.a("s_mov_b64 exec, vcc")
            s.a(f"s_add_u32 s66, s66, 1\ns_cmp_gt_u32 s66, {lim}\ns_cbranch_scc1 {Ls if alt_addrs else 'L_end'}")
            s.a(f"{Lq}:")
            for l in loads: s.a(l)
            s.a("s_waitcnt vmcnt(0)")
            s.tagacc(acc, regs, tag)
            s.a(f"v_and_b32 v{tmp}, {mask}, v{acc}\nv_cmp_ne_u32 vcc, 0, v{tmp}\ns_cbranch_vccnz {Lp}")
            if masked: s.a("s_mov_b64 exec, -1")
            o = []
        if alt_addrs:
            o += [f"{Ls}:", f"s_cmp_gt_u32 s66, {LIMIT}", "s_cbranch_scc1 L_end", f"v_mov_b32 v{tmp}, {ALT}", f"v_cndmask_b32 v{tmp}, 0, v{tmp}, vcc"]
            o += [f"v_xor_b32 v{r}, v{r}, v{tmp}" for r in alt_addrs] + [f"s_branch {Lq}"]
        elif first_issued:
            o += [f"{Ls}:", "s_branch L_end"]
        s.ool += o
    def poll2(s, items, addr, tag, mask, acc, tmp, tmpa, thr, pre=None, masked=False, extra=()):
        Lp = s.lab("Q"); Ls = s.lab("Qs"); Ld = s.lab("Qd")
        s.a("s_mov_b32 s66, 0")
        if masked: s.a("s_mov_b64 vcc, exec")
        s.a(f"{Lp}:")
        if masked: s.a("s_mov_b64 exec, vcc")
        s.a(f"s_add_u32 s66, s66, 1\ns_cmp_gt_u32 s66, {thr}\ns_cbranch_scc1 {Ls}")
        if pre: s.a(pre)
        regs = []
        for l, r, rf in items: s.a(l.replace("@A", str(addr))); regs += (rf if masked else r)
        for l in extra: s.a(l)
        s.a(f"s_waitcnt vmcnt({len(extra)})")
        s.tagacc(acc, regs, tag)
        s.a(f"v_and_b32 v{tmp}, {mask}, v{acc}\nv_cmp_ne_u32 vcc, 0, v{tmp}\ns_cbranch_vccnz {Lp}")
        if masked: s.a("s_mov_b64 exec, -1")
        s.a(f"{Ld}:")
        s.slowpath(Ls, Ld, items, addr, tag, mask, acc, tmp, tmpa)
    def slowpath(s, Ls, Ld, items, addr, tag, mask, acc, tmp, tmpa):
        main = s.L; s.L = []
        s.a(f"{Ls}:\ns_mov_b64 exec, -1\ns_waitcnt vmcnt(0)")
        for l, _, r in items:
            Li = s.lab("Qi")
            s.a(f"v_mov_b32 v{tmpa}, v{addr}")
            s.a(f"{Li}:")
            s.a(f"s_add_u32 s66, s66, 1\ns_cmp_gt_u32 s66, {LIMIT}\ns_cbranch_scc1 L_end")
            s.a(l.replace("@A", str(tmpa)))
            s.a("s_waitcnt vmcnt(0)")
            s.tagacc(acc, r, tag)
            s.a(f"v_and_b32 v{tmp}, {mask}, v{acc}\nv_cmp_ne_u32 vcc, 0, v{tmp}")
            s.a(f"v_mov_b32 v{tmp}, {ALT}\nv_cndmask_b32 v{tmp}, 0, v{tmp}, vcc\nv_xor_b32 v{tmpa}, v{tmpa}, v{tmp}")
            s.a(f"s_cbranch_vccnz {Li}")
        s.a(f"s_branch {Ld}")
        s.ool += s.L; s.L = main
    def dpp(s, op, d, a_, b_, ctl, bank=0xf):
        if b_ is None: s.a(f"{op}_dpp v{d}, v{a_} {ctl} row_mask:0xf bank_mask:{bank:#x}")
        else: s.a(f"{op}_dpp v{d}, v{a_}, v{b_} {ctl} row_mask:0xf bank_mask:{bank:#x}")
    def mfma(s, d, a_, b_, c):
        cs = "0" if c is None else f"v[{c}:{c+3}]"
        s.a(f"v_mfma_f32_16x16x32_bf16 v[{d}:{d+3}], v[{a_}:{a_+3}], v[{b_}:{b_+3}], {cs}")
    def rnd1(s, d, x):
        s.a(f"v_cvt_pk_bf16_f32 v{d}, v{x}, v{x}\nv_and_b32 v{d}, s62, v{d}")
    def unpack(s, lo, hi, p):
        s.a(f"v_lshlrev_b32 v{lo}, 16, v{p}\nv_and_b32 v{hi}, s62, v{p}")
    def rnd2(s, lo, hi, tmp):
        s.a(f"v_cvt_pk_bf16_f32 v{tmp}, v{lo}, v{hi}")
        s.unpack(lo, hi, tmp)
    def pk(s, op, d, x, y, z=None, mod=""):
        if z is None: s.a(f"v_pk_{op}_f32 v[{d}:{d+1}], v[{x}:{x+1}], v[{y}:{y+1}] {mod}")
        else: s.a(f"v_pk_{op}_f32 v[{d}:{d+1}], v[{x}:{x+1}], v[{y}:{y+1}], v[{z}:{z+1}] {mod}")
    def frag_quad(s, F0, p0, p1, n=2):
        for u in range(2*n):
            s.dpp("v_mov_b32", F0+2*u, p0, None, f"quad_perm:[{u},{u},{u},{u}]")
            s.dpp("v_mov_b32", F0+2*u+1, p1, None, f"quad_perm:[{u},{u},{u},{u}]")
    def frag_pair(s, F0, p):
        for k in range(4): s.dpp("v_mov_b32", F0+k, p, None, f"quad_perm:[{k},{k},{k},{k}]")
        for k in range(4): s.dpp("v_mov_b32", F0+4+k, F0+k, None, "row_ror:8")
    def wave_sum2(s, a_, b_, t):
        for ctl in ("quad_perm:[1,0,3,2]", "quad_perm:[2,3,0,1]", "row_ror:4", "row_ror:8"):
            s.dpp("v_add_f32", a_, a_, a_, ctl); s.dpp("v_add_f32", b_, b_, b_, ctl)
        s.a(f"v_permlane16_swap_b32 v{a_}, v{b_}\nv_add_f32 v{a_}, v{a_}, v{b_}")
        s.a(f"v_mov_b32 v{t}, v{a_}\nv_permlane32_swap_b32 v{a_}, v{t}\nv_add_f32 v{a_}, v{a_}, v{t}")
    def ln_finish(s, mean, var):
        s.a(f"v_max_f32 v{var}, 0, v{var}")
        s.a(f"v_cvt_pk_bf16_f32 v{var}, v{mean}, v{var}")
        s.a(f"v_lshlrev_b32 v{mean}, 16, v{var}\nv_and_b32 v{var}, s62, v{var}")
        s.a(f"v_add_f32 v{var}, {f32(1e-5)}, v{var}")
        s.rnd1(var, var)
        s.a(f"v_sqrt_f32 v{var}, v{var}")
        s.rnd1(var, var)
        s.a(f"v_rcp_f32 v{var}, v{var}")

    def prologue(s):
        if s.stamps and (s.o.get("dbg") or "leak2" in s.o):
            for k in range(1, 12): s.a(f"s_mov_b32 s{72+2*k}, 0")
        s.stamp(0)
        if s.o.get("early3"):
            if s.o.get("cpf") == "0":
                s.a("s_getpc_b64 s[8:9]\nv_lshlrev_b32 v2, 5, v0\nglobal_load_dword v255, v2, s[8:9]")
            if s.o.get("cpf") == "0F":
                s.a("s_cmp_lt_u32 s2, 0xe0\ns_cbranch_scc1 L_k0\ns_getpc_b64 s[8:9]\nv_lshlrev_b32 v2, 5, v0\nglobal_load_dword v255, v2, s[8:9]")
            if s.o.get("cpf") == "0A":
                s.a("s_cmp_ge_u32 s2, 0x20\ns_cbranch_scc1 L_k0\ns_getpc_b64 s[8:9]\nv_lshlrev_b32 v2, 5, v0\nglobal_load_dword v255, v2, s[8:9]")
            if s.o.get("cpf") == "1":
                s.a("s_load_dwordx16 s[16:31], s[0:1], 0\ns_getpc_b64 s[8:9]\nv_lshlrev_b32 v2, 5, v0\nglobal_load_dword v255, v2, s[8:9]")
            s.a("""L_k0:
            s_load_dwordx16 s[16:31], s[0:1], 0
            s_load_dwordx8 s[32:39], s[0:1], 64
            s_load_dwordx4 s[40:43], s[0:1], 96
            s_load_dwordx2 s[44:45], s[0:1], 112
            @COOP
            s_cmp_ge_u32 s2, 0xc0
            s_cbranch_scc1 L_T
            s_bitcmp1_b32 s2, 7
            s_cbranch_scc1 L_W""")
            s.lanes(s.o.get("cpf", "A") == "A")
            return
        s.a("""s_cmp_ge_u32 s2, 256
        s_cbranch_scc1 L_exit
        s_load_dwordx16 s[16:31], s[0:1], 0
        s_load_dwordx8 s[32:39], s[0:1], 64
        s_load_dwordx4 s[40:43], s[0:1], 96
        s_load_dwordx2 s[44:45], s[0:1], 112
        @COOP
        v_lshrrev_b32 v1, 6, v0
        s_and_b32 s4, s2, 7
        s_lshr_b32 s5, s2, 3
        v_readfirstlane_b32 s3, v1
        s_getpc_b64 s[8:9]
        L_pc0:
        v_lshlrev_b32 v2, 11, v1
        v_and_b32 v1, 63, v0
        v_lshl_add_u32 v2, v1, 7, v2
        v_min_u32 v2, L_exit-L_pc0, v2
        s_mov_b64 exec, 0xffff
        global_load_dword v255, v2, s[8:9]
        s_mov_b64 exec, -1
        v_and_b32 v2, 15, v0
        v_lshrrev_b32 v3, 4, v1
        s_lshl_b32 s14, s3, 14
        s_mov_b32 m0, s14
        s_cmp_ge_u32 s5, 16
        s_cbranch_scc1 L_T""")
    def lanes(s, pf):
        s.a("""v_lshrrev_b32 v1, 6, v0
        s_and_b32 s4, s2, 7
        s_lshr_b32 s5, s2, 3
        v_readfirstlane_b32 s3, v1""")
        if pf:
            s.a("""s_getpc_b64 s[8:9]
            L_pc0:
            v_lshlrev_b32 v2, 11, v1
            v_and_b32 v1, 63, v0
            v_lshl_add_u32 v2, v1, 7, v2
            v_min_u32 v2, L_exit-L_pc0, v2
            s_mov_b64 exec, 0xffff
            global_load_dword v255, v2, s[8:9]
            s_mov_b64 exec, -1""")
        else: s.a("v_and_b32 v1, 63, v0")
        s.a("""v_and_b32 v2, 15, v0
        v_lshrrev_b32 v3, 4, v1
        s_lshl_b32 s14, s3, 14
        s_mov_b32 m0, s14""")
    def consts(s):
        s.a(f"""s_mov_b32 s60, 0x07060302
        s_mov_b32 s61, 0x05040100
        s_mov_b32 s62, 0xffff0000
        s_mov_b32 s63, 0xffffff00
        s_mov_b32 s64, {f32(1.4426950408889634)}
        s_getreg_b32 s49, hwreg(HW_REG_XCC_ID, 0, 4)""")
    def tags(s):
        s.a(f"""s_add_u32 s46, s48, 1
        s_and_b32 s46, s46, 0xff
        s_lshl_b32 s47, s46, 8
        s_or_b32 s47, s47, s46
        s_lshl_b32 s67, s49, 8
        s_or_b32 s67, s67, s46
        v_mov_b32 v{vT8}, s46
        v_mov_b32 v{vT16}, s47
        v_mov_b32 v{vTX}, s67""")

    def path_A(s):
        a = s.a
        VD, KF, QR, QF, SA, BF, OA = 64, 128, 192, 224, 16, 32, 240
        SQ = SCR + 256
        ep = f"s_load_dword s48, s[44:45], {EPOCH}"
        km = s.o.get("kvmap", 0)
        GS = 0x4000 if km else 0x1000
        if km >= 10:
            cM, cR, cn, gsh = (181, 119, 16, 10) if km == 10 else (37, 29, 4, 12)
            cM, cR = s.o.get("hM", cM), s.o.get("hR", cR)
            kvoff = f"s_mul_i32 s96, s8, {cR << gsh}\ns_lshl_b32 s9, s7, 3\ns_add_u32 s9, s9, s3\ns_mul_i32 s9, s9, {(cM*cn) << gsh}\ns_add_u32 s96, s96, s9\ns_lshl_b32 s8, s8, 21\ns_add_u32 s8, s8, 0x180000\ns_and_b32 s97, s96, 0x7ffff"
        elif km >= 3:
            rho = {3: "s_add_u32 s12, s5, s4\ns_and_b32 s12, s12, 7", 4: "s_and_b32 s12, s5, 7", 5: "s_mov_b32 s12, s4",
                   6: "s_mul_i32 s12, s4, 9\ns_add_u32 s12, s12, s5\ns_and_b32 s12, s12, 31", 7: "s_lshl_b32 s12, s5, 1\ns_add_u32 s12, s12, s4\ns_and_b32 s12, s12, 7"}[km]
            kvoff = rho + "\ns_lshl_b32 s12, s12, 12\ns_xor_b32 s12, s12, s14\ns_lshl_b32 s8, s8, 21\ns_lshl_b32 s9, s7, 17\ns_add_u32 s8, s8, s9\ns_add_u32 s8, s8, s12\ns_add_u32 s8, s8, 0x180000"
        elif km == 0:
            kvoff = "s_lshl_b32 s8, s8, 21\ns_lshl_b32 s9, s7, 17\ns_add_u32 s8, s8, s9\ns_add_u32 s8, s8, s14\ns_add_u32 s8, s8, 0x180000"
        else:
            rot = "s_add_u32 s12, s3, s8\ns_and_b32 s12, s12, 7\ns_lshl_b32 s12, s12, 16" if km == 2 else "s_lshl_b32 s12, s3, 16"
            kvoff = rot + "\ns_lshl_b32 s8, s8, 21\ns_lshl_b32 s9, s7, 12\ns_add_u32 s8, s8, s9\ns_add_u32 s8, s8, s12\ns_add_u32 s8, s8, 0x180000"
        linv = km == 10 or s.o.get("linv")
        if linv:
            kaddr = """v_lshlrev_b32 v5, 4, v1
            v_lshlrev_b32 v4, 6, v3
            v_xor_b32 v5, v5, v4
            v_xor_b32 v6, 16, v5
            v_xor_b32 v7, 32, v5
            v_xor_b32 v8, 48, v5"""
        else:
            kaddr = """v_xor_b32 v4, v2, v3
            v_lshlrev_b32 v4, 4, v4
            v_lshl_add_u32 v5, v3, 8, v4
            v_xor_b32 v6, 64, v5
            v_xor_b32 v7, 0x80, v5
            v_xor_b32 v8, 0xc0, v5"""
        a(f"""s_lshr_b32 s6, s5, 2
        s_and_b32 s7, s5, 3
        s_lshl_b32 s8, s6, 3
        s_add_u32 s8, s8, s4
        {kvoff}
        {kaddr}
        s_waitcnt lgkmcnt(0)
        s_add_u32 s10, s18, s8
        s_addc_u32 s11, s19, 0
        {"" if s.o.get("late_ep") else ep}""")
        s.stamp(1)
        pfq = s.o.get("pfq", 0)
        if pfq:
            a(f"""s_lshl_b32 s9, s5, 3
            s_add_u32 s9, s9, s3
            s_mul_i32 s9, s9, {pfq}
            s_add_u32 s9, s9, {512 - 128*pfq}
            s_lshl_b32 s9, s9, 13
            s_lshl_b32 s12, s4, 10
            s_add_u32 s9, s9, s12
            v_lshl_add_u32 v9, v1, 4, s9""")
            for k in range(pfq):
                a(f"global_load_dwordx4 v[{VD}:{VD+3}], v9, s[22:23] nt")
                if k < pfq - 1: a("v_add_u32 v9, 0x2000, v9")
        n1, w1 = s.o.get("kwin", (0, 16))
        va, vb = s.o.get("va", 2), s.o.get("vb", 2)
        tlbA = "s_mov_b64 exec, 1\nglobal_load_dword v213, v9, s[12:13] nt\ns_mov_b64 exec, -1" if s.o.get("tlbA") else ""
        pret = f"""s_cmp_lg_u32 s3, {s.o.get("touch_w", 7)}
            s_cbranch_scc1 L_A_nt
            global_load_dwordx4 v[{QR}:{QR+3}], v12, s[44:45] sc1
            global_load_dwordx4 v[{QR+4}:{QR+7}], v12, s[44:45] offset:1024 sc1
            global_load_dwordx4 v[{QR}:{QR+3}], v214, s[44:45] sc1
            global_load_dwordx4 v[{QR+4}:{QR+7}], v214, s[44:45] offset:1024 sc1
            L_A_nt:"""
        def setup():
            a(f"""s_add_u32 s12, s20, s8
            s_addc_u32 s13, s21, 0
            v_lshlrev_b32 v9, 4, v2
            v_lshl_add_u32 v9, v3, 10, v9
            {tlbA}
            v_mov_b32 v10, 0xff800000
            v_lshrrev_b32 v251, 2, v2
            v_lshlrev_b32 v11, 2, v251
            v_add_u32 v11, {SCR}, v11
            ds_write_b32 v11, v10
            v_mov_b32 v208, {SCR}
            v_mov_b32 v209, 1
            v_mov_b32 v210, 0
            v_mov_b32 v211, 0
            ds_write_b64 v208, v[210:211] offset:16
            s_mul_i32 s9, s3, 576
            v_lshl_add_u32 v252, v1, 3, s9
            v_add_u32 v253, 0x10000, v252""")
            s.consts(); s.masks()
            a(f"""s_lshl_b32 s15, s4, 2
            s_add_u32 s15, s15, s6
            s_lshl_b32 s9, s15, 11
            s_add_u32 s9, s9, {H2A}
            v_lshl_add_u32 v12, v1, 4, s9
            s_lshl_b32 s15, s15, 2
            s_add_u32 s15, s15, s7
            s_lshl_b32 s9, s15, 11
            s_add_u32 s9, s9, {H3A}
            v_lshl_add_u32 v14, v1, 4, s9
            v_mov_b32 v214, v14
            {"" if (s.o.get("touch_at") or s.o.get("fe_touch")) else pret}
            v_lshl_add_u32 v254, v0, 3, s9
            v_mul_u32_u24 v212, 576, v251
            v_lshl_add_u32 v212, v3, 7, v212
            v_and_b32 v14, 3, v0
            v_lshl_add_u32 v212, v14, 4, v212
            v_add_u32 v212, s14, v212
            v_and_b32 v215, 1, v0
            v_mul_u32_u24 v215, 0xff, v215
            s_mul_i32 s9, s3, 1280
            s_add_u32 s9, s9, {SQ}
            v_lshrrev_b32 v14, 5, v1
            v_lshlrev_b32 v200, 3, v1
            v_lshl_add_u32 v200, v14, 6, v200
            v_add_u32 v200, s9, v200
            v_mul_u32_u24 v201, 320, v251
            v_lshl_add_u32 v201, v3, 4, v201
            v_add_u32 v201, s9, v201
            s_lshl_b32 s9, s3, 2
            s_add_u32 s9, s9, {SCR+64}
            v_lshl_add_u32 v15, v251, 5, s9""")
        sp = s.o.get("setup_at", 4)
        for n in range(16):
            grp, n4 = n >> 2, n & 3
            if n == sp:
                a("@SPLIT A"); setup()
                if s.o.get("pri"): a("s_waitcnt lgkmcnt(0)\ns_barrier\ns_setprio 3")
            if w1 <= n < n1: a(f"s_waitcnt vmcnt({w1-1})")
            if n == 4 and s.o.get("late_ep"): a(ep)
            if n and n == s.o.get("touch_at"): a(pret)
            if km == 10:
                a(f"v_add_u32 v10, s97, v{5+n4}\nglobal_load_lds_dwordx4 v10, s[10:11] nt")
                if n < 15: a(f"s_add_u32 s97, s97, {cM << 10}\ns_and_b32 s97, s97, 0x7ffff\ns_add_u32 m0, m0, 0x400")
                continue
            if km == 12:
                a(f"v_add_u32 v10, s97, v{5+n4}\nglobal_load_lds_dwordx4 v10, s[10:11] offset:{n4*1024} nt")
                if n4 == 3 and grp < 3: a(f"s_add_u32 s97, s97, {cM << 12}\ns_and_b32 s97, s97, 0x7ffff\ns_add_u32 m0, m0, 0x1000")
                continue
            a(f"global_load_lds_dwordx4 v{5+n4}, s[10:11] offset:{n4*1024} nt")
            if n4 == 3 and grp < 3:
                if km >= 3: a(f"s_xor_b32 s9, s8, {(grp+1) << 12}\ns_add_u32 s10, s18, s9\ns_addc_u32 s11, s19, 0\ns_add_u32 m0, m0, 0x1000")
                else: a(f"s_add_u32 s10, s10, {GS}\ns_addc_u32 s11, s11, 0\ns_add_u32 m0, m0, 0x1000")
        if km >= 10: a("s_and_b32 s97, s96, 0x7ffff")
        if linv:
            a("""v_xor_b32 v4, v2, v3
            v_lshlrev_b32 v4, 4, v4
            v_and_b32 v5, 3, v2
            v_lshl_add_u32 v4, v5, 10, v4
            v_lshrrev_b32 v5, 2, v2
            v_lshl_add_u32 v5, v5, 8, v4
            v_lshlrev_b32 v9, 4, v1""")
        else: a("v_lshl_add_u32 v5, v2, 8, v4")
        a(f"""v_add_u32 v5, s14, v5
        v_xor_b32 v6, 64, v5
        v_xor_b32 v7, 0x80, v5
        v_xor_b32 v8, 0xc0, v5
        s_waitcnt lgkmcnt(0)""")
        s.tags()
        a("s_setprio 2" if s.o.get("pri") else "s_barrier")
        def vloads(g0, g1):
            for grp in range(g0, g1):
                for j in range(4):
                    r = VD + (grp*4 + j)*4
                    if km == 10:
                        a(f"v_add_u32 v10, s97, v9\nglobal_load_dwordx4 v[{r}:{r+3}], v10, s[12:13] nt\ns_add_u32 s97, s97, {cM << 10}\ns_and_b32 s97, s97, 0x7ffff")
                    elif km == 12:
                        if j == 0: a("v_add_u32 v10, s97, v9")
                        a(f"global_load_dwordx4 v[{r}:{r+3}], v10, s[12:13] offset:{j*256} nt")
                        if j == 3: a(f"s_add_u32 s97, s97, {cM << 12}\ns_and_b32 s97, s97, 0x7ffff")
                    else: a(f"global_load_dwordx4 v[{r}:{r+3}], v9, s[12:13] offset:{j*(1024 if linv else 256)} nt")
                if km >= 10: pass
                elif grp < 3 and km >= 3: a(f"s_xor_b32 s9, s8, {(grp+1) << 12}\ns_add_u32 s12, s20, s9\ns_addc_u32 s13, s21, 0")
                elif grp < 3: a(f"s_add_u32 s12, s12, {GS}\ns_addc_u32 s13, s13, 0")
                if grp == s.o.get("pf_grp", -1):
                    L = s.lab("PF")
                    a(f"""s_cmp_lg_u32 s3, {s.o.get("pf_wave", 7)}
                    s_cbranch_scc1 {L}
                    s_lshl_b32 s9, s15, 7
                    s_add_u32 s9, s9, {ML3A + ALT + 64}
                    v_lshl_add_u32 v213, v2, 2, s9
                    s_mov_b64 exec, 15
                    global_store_dword v213, v{vT8}, s[44:45] sc1
                    s_mov_b64 exec, -1
                    {L}:""")
        qloads = [f"global_load_dwordx4 v[{QR+4*k}:{QR+4*k+3}], v12, s[44:45] offset:{1024*k} sc1" for k in range(2)]
        two = s.o.get("two", 0)
        s2 = s.o.get("s2", 0)
        def kreads():
            for t in range(4):
                for st in range(4):
                    r = KF + (t*4 + st)*4
                    a(f"ds_read_b128 v[{r}:{r+3}], v{5+st} offset:{t*4096}")
        if s2:
            g1q = s.o.get("g1q", 4)
            if va:
                vloads(0, va)
                a("s_barrier")
            s.stamp(2)
            a(f"s_cmp_lt_u32 s3, {two}\ns_cbranch_scc1 L_A_g1\ns_setprio 2")
            for l in qloads: a(l)
            a(f"s_waitcnt vmcnt({4*va+2})")
            kreads()
            a("s_waitcnt vmcnt(0)\nL_A_g1r:")
            main = s.L; s.L = []
            a("L_A_g1:")
            vloads(va, g1q)
            for l in qloads: a(l)
            vloads(g1q, 4)
            a(f"s_waitcnt vmcnt(18)")
            kreads()
            a(f"s_waitcnt vmcnt({16-4*g1q})\ns_branch L_A_g1r")
            s.ool += s.L; s.L = main
            s.stamp(3)
            s.poll(qloads, list(range(QR, QR+8)), vTX, "0xff", 13, 14, alt_addrs=(12,), thr=32, first_issued=True, first_wait=63)
        else:
            pri = s.o.get("pri", 0)
            if va:
                vloads(0, va)
                a("s_setprio 1" if pri == 1 else "s_barrier")
            s.stamp(2)
            for l in qloads: a(l)
            a("s_setprio 0" if pri else "s_barrier")
        if s2: pass
        elif two:
            a(f"s_cmp_lt_u32 s3, {two}\ns_cbranch_scc1 L_A_g1")
            a(f"s_waitcnt vmcnt({4*va+2})")
            kreads()
            a("s_waitcnt vmcnt(0)\nL_A_g1r:")
            main = s.L; s.L = []
            a("L_A_g1:")
            vloads(va, 4)
            a(f"s_waitcnt vmcnt(18)")
            kreads()
            a(f"s_waitcnt vmcnt({16-4*va})\ns_branch L_A_g1r")
            s.ool += s.L; s.L = main
            s.stamp(3)
            s.poll(qloads, list(range(QR, QR+8)), vTX, "0xff", 13, 14, alt_addrs=(12,), thr=16, first_issued=True, first_wait=63)
        else:
            vloads(va, va + vb)
            a(f"s_waitcnt vmcnt({4*(va+vb)+2})")
            s.stamp(3)
            kreads()
            s.poll(qloads, list(range(QR, QR+8)), vTX, "0xff", 13, 14, alt_addrs=(12,), thr=16, first_issued=True, first_wait=4*vb)
        def late_v():
            L = s.lab("LV")
            a(f"s_cmp_lt_u32 s3, {two}\ns_cbranch_scc1 {L}")
            if s2: a("s_setprio 0")
            vloads(va, 4)
            if s2: a("s_setprio 2")
            a(f"{L}:")
        s.stamp(4); s.cy("B", 0)
        if s.o.get("aprio"): a("s_cmp_lt_u32 s3, 4\ns_cbranch_scc1 L_A_np\ns_setprio 2\nL_A_np:")
        for k in range(4): a(f"v_perm_b32 v{QR+10+k}, v{QR+2*k+1}, v{QR+2*k}, s60")
        a(f"ds_write_b64 v200, v[{QR+10}:{QR+11}]\nds_write_b64 v200, v[{QR+12}:{QR+13}] offset:640")
        a("v_and_b32 v14, 0xff00, v13\nv_cmp_ne_u32 s[68:69], 0, v14")
        a("s_waitcnt lgkmcnt(0)")
        for st in range(4): a(f"ds_read_b128 v[{QF+4*st}:{QF+4*st+3}], v201 offset:{64*st}")
        for st in range(4):
            a(f"s_waitcnt lgkmcnt({3-st})")
            for t in range(4):
                s.mfma(SA+4*t, KF+(t*4+st)*4, QF+4*st, None if st == 0 else SA+4*t)
        s.cy("B", 1)
        if not two: vloads(va + vb, 4)
        elif s.o.get("late_at", 1) == 0: late_v()
        s.cy("B", 2)
        s.compact4(SA)
        X = SA
        MW, LW, FW = 206, 207, 210
        s.rnd2(X, X+1, X+4); s.rnd2(X+2, X+3, X+5)
        for r in range(4): a(f"v_mul_f32 v{X+r}, {f32(128 ** -0.5)}, v{X+r}")
        s.rnd2(X, X+1, X+4); s.rnd2(X+2, X+3, X+5)
        a(f"""v_max3_f32 v{MW}, v{X}, v{X+1}, v{X+2}
        v_max_f32 v{MW}, v{MW}, v{X+3}""")
        def wave_red(op, r, t):
            s.dpp(op, r, r, r, "quad_perm:[1,0,3,2]"); s.dpp(op, r, r, r, "quad_perm:[2,3,0,1]")
            a(f"""v_mov_b32 v{t}, v{r}
            v_permlane16_swap_b32 v{r}, v{t}
            {op} v{r}, v{r}, v{t}
            v_mov_b32 v{t}, v{r}
            v_permlane32_swap_b32 v{r}, v{t}
            {op} v{r}, v{r}, v{t}""")
        wave_red("v_max_f32", MW, X+5)
        s.cy("B", 3)
        a(f"""s_mov_b64 exec, 0x1111
        ds_max_f32 v11, v{MW}
        s_mov_b64 exec, 1
        ds_add_u32 v208, v209 offset:16
        s_mov_b64 exec, -1""")
        if two and s.o.get("late_at", 1) == 3: late_v()
        for r in range(4): a(f"v_sub_f32 v{X+r}, v{X+r}, v{MW}")
        for r in range(4): a(f"v_mul_f32 v{X+r}, s64, v{X+r}")
        for r in range(4): a(f"v_exp_f32 v{X+r}, v{X+r}")
        a(f"""v_add_f32 v{LW}, v{X}, v{X+1}
        v_add_f32 v{X+5}, v{X+2}, v{X+3}
        v_cvt_pk_bf16_f32 v{X+8}, v{X}, v{X+1}
        v_add_f32 v{LW}, v{LW}, v{X+5}
        v_cvt_pk_bf16_f32 v{X+9}, v{X+2}, v{X+3}""")
        def place(blk):
            for jp in range(4):
                m = 0xffffffff ^ (0x11111111 << jp)
                a(f"s_mov_b32 vcc_lo, {m:#x}\ns_mov_b32 vcc_hi, {m:#x}")
                for k in range(4):
                    t = 2*blk + (k >> 1)
                    a(f"v_cndmask_b32_dpp v{BF+(blk*4+jp)*4+k}, v{X+8+(k & 1)}, v211, vcc quad_perm:[{t},{t},{t},{t}] row_mask:0xf bank_mask:0xf")
        early = s.o.get("early_ml", 0)
        if not early: place(0)
        wave_red("v_add_f32", LW, X+5)
        if two and s.o.get("late_at", 1) == 1: late_v()
        def perm(blk, jd, kp):
            T = KF + 32*blk
            s0 = VD + (blk*8 + 2*kp+1)*4 + (jd >> 1); s1 = VD + (blk*8 + 2*kp)*4 + (jd >> 1)
            a(f"v_perm_b32 v{T+jd*4+kp}, v{s0}, v{s1}, s{60 if jd & 1 else 61}")
        def pmf(blk, j2):
            s.mfma(OA+4*(j2 >> 2), KF+32*blk+j2*4, BF+(blk*4+(j2 & 3))*4, None if (blk == 0 and (j2 & 3) == 0) else OA+4*(j2 >> 2))
        def pv0():
            if va < 2: a("s_waitcnt vmcnt(8)")
            for jd in range(8):
                for kp in range(4): perm(0, jd, kp)
                if jd >= 1: pmf(0, jd-1)
            pmf(0, 7)
        s.cy("B", 4)
        if not early: pv0()
        s.cy("B", 5)
        if two and s.o.get("late_at", 1) == 2: late_v()
        a(f"""s_mov_b32 s66, 0
        L_A_sp:
        ds_read_b32 v{X+10}, v208 offset:16
        ds_read_b32 v{X+11}, v11
        s_add_u32 s66, s66, 1
        s_cmp_gt_u32 s66, {LIMIT*8}
        s_cbranch_scc1 L_end
        s_waitcnt lgkmcnt(0)
        v_cmp_gt_u32 vcc, 8, v{X+10}
        s_cbranch_vccnz L_A_sp
        v_sub_f32 v{FW}, v{MW}, v{X+11}
        v_mul_f32 v{FW}, s64, v{FW}
        v_exp_f32 v{FW}, v{FW}
        v_mul_f32 v{LW}, v{LW}, v{FW}
        s_mov_b64 exec, 0x1111
        ds_write_b32 v15, v{LW}
        s_mov_b64 exec, 1
        ds_add_rtn_u32 v{X+12}, v208, v209 offset:20
        s_mov_b64 exec, -1""")
        s.cy("B", 6)
        for o in (0, 2): s.pk("mul", X+o, X+o, FW, mod="op_sel_hi:[1,0]")
        a(f"v_cvt_pk_bf16_f32 v{X+8}, v{X}, v{X+1}\nv_cvt_pk_bf16_f32 v{X+9}, v{X+2}, v{X+3}")
        if early: place(0)
        else:
            for o in (0, 2, 4, 6): s.pk("mul", OA+o, OA+o, FW, mod="op_sel_hi:[1,0]")
            place(1)
        s.cy("B", 7)
        a(f"""s_waitcnt lgkmcnt(0)
        v_readfirstlane_b32 s9, v{X+12}
        s_cmp_eq_u32 s9, 7
        s_cbranch_scc1 L_A_ml""")
        def pv1_head(extra):
            if early: pv0(); place(1)
            for kp in range(3):
                a(f"s_waitcnt vmcnt({6-2*kp+extra})")
                for jd in range(8): perm(1, jd, kp)
            a(f"s_waitcnt vmcnt({extra})")
        main = s.L; s.L = []
        a(f"""L_A_ml:
        v_lshlrev_b32 v14, 5, v251
        v_add_u32 v14, {SCR+64}, v14
        ds_read_b128 v[{X}:{X+3}], v14
        ds_read_b128 v[{X+4}:{X+7}], v14 offset:16
        s_lshl_b32 s9, s15, 7
        s_add_u32 s9, s9, {ML3A}
        v_lshl_add_u32 v13, v2, 2, s9
        v_and_b32 v14, 1, v0
        v_cmp_ne_u32 vcc, 0, v14
        v_add_u32 v14, {ALT}, v13
        s_waitcnt lgkmcnt(0)""")
        s.pk("add", X, X, X+2); s.pk("add", X+4, X+4, X+6); s.pk("add", X, X, X+4)
        a(f"""v_add_f32 v{X}, v{X}, v{X+1}
        v_cndmask_b32 v{X}, v{X+11}, v{X}, vcc
        v_and_or_b32 v{X}, v{X}, s63, v{vT8}
        s_mov_b64 exec, 0xffff
        global_store_dword v13, v{X}, s[44:45]
        global_store_dword v14, v{X}, s[44:45] sc1
        s_mov_b64 exec, -1""")
        pv1_head(2)
        a("s_branch L_A_pv1")
        s.ool += s.L; s.L = main
        s.stamp(10)
        pv1_head(0)
        a("L_A_pv1:")
        s.stamp(5); s.cy("A", 0); s.cy("B", 8)
        perm(1, 0, 3); perm(1, 1, 3); perm(1, 2, 3); perm(1, 3, 3)
        pmf(1, 0); perm(1, 4, 3); perm(1, 5, 3)
        pmf(1, 1); perm(1, 6, 3); perm(1, 7, 3)
        for j2 in (2, 3, 4, 5, 6, 7): pmf(1, j2)
        s.cy("A", 1)
        a(f"""s_cmp_ge_u32 s3, 4
        ds_write_b128 v212, v[{OA}:{OA+3}]
        ds_write_b128 v212, v[{OA+4}:{OA+7}] offset:64
        s_waitcnt lgkmcnt(0)
        s_barrier
        s_cbranch_scc1 {"L_A_apf" if s.o.get("apf") else "L_end"}""")
        if s.o.get("apf"):
            LXa = s.o.get("lightx", 7)
            s.ool += ["L_A_apf:", f"s_cmp_eq_u32 s4, {LXa}", "s_cbranch_scc1 L_end", f"s_xor_b32 s9, s4, {LXa ^ 7}", "s_lshl_b32 s9, s9, 18",
                      "s_lshl_b32 s10, s5, 14", "s_add_u32 s9, s9, s10", "s_and_b32 s10, s3, 3", "s_lshl_b32 s10, s10, 12", "s_add_u32 s9, s9, s10",
                      "v_lshl_add_u32 v9, v1, 4, s9", f"s_sleep {s.o['apf']}"]
            s.ool += [f"global_load_dwordx4 v[{VD}:{VD+3}], v9, s[32:33] offset:{1024*k} nt" for k in range(4)] + ["s_branch L_end"]
        s.cy("A", 2)
        for w in range(8): a(f"ds_read_b64 v[{X+2*w}:{X+2*w+1}], v{252 + (w >> 2)} offset:{(w & 3)*16384}")
        a("s_waitcnt lgkmcnt(6)"); s.pk("add", X, X, X+2)
        a("s_waitcnt lgkmcnt(4)"); s.pk("add", X+4, X+4, X+6)
        a("s_waitcnt lgkmcnt(2)"); s.pk("add", X+8, X+8, X+10); s.pk("add", X, X, X+4); s.pk("add", X, X, X+8)
        a("s_waitcnt lgkmcnt(0)"); s.pk("add", X+12, X+12, X+14); s.pk("add", X, X, X+12)
        a(f"""v_bfi_b32 v{X+1}, v215, v{vT8}, v{X+1}
        global_store_dwordx2 v254, v[{X}:{X+1}], s[44:45]""")
        if s.o.get("alt_always"):
            a(f"v_add_u32 v254, {ALT}, v254\nglobal_store_dwordx2 v254, v[{X}:{X+1}], s[44:45] sc1\nL_A_pub3:")
        else:
            a("s_cmp_lg_u64 s[68:69], 0\ns_cbranch_scc1 L_A_pub2\nL_A_pub3:")
        s.ool += ["L_A_pub2:", f"v_add_u32 v254, {ALT}, v254", f"global_store_dwordx2 v254, v[{X}:{X+1}], s[44:45] sc1", "s_branch L_A_pub3"]
        s.stamp(6); s.cy("A", 3)
        a("s_cmp_lg_u32 s3, 0\ns_cbranch_scc1 L_end")
        a(f"""s_bfe_u32 s10, s2, 0x10003
        s_lshr_b32 s11, s2, 4
        s_lshl_b32 s11, s11, 3
        s_add_u32 s11, s11, s4
        s_lshr_b32 s6, s11, 5
        s_lshl_b32 s6, s6, 1
        s_add_u32 s6, s6, s10
        s_bfe_u32 s7, s11, 0x30002
        s_and_b32 s8, s11, 3
        s_lshl_b32 s8, s8, 4
        s_lshl_b32 s9, s7, 6
        s_add_u32 s8, s8, s9
        v_and_b32 v9, 3, v1
        v_lshlrev_b32 v4, 2, v9
        v_lshrrev_b32 v5, 5, v1
        v_lshl_add_u32 v4, v5, 1, v4
        v_and_b32 v5, 1, v3
        v_add3_u32 v4, v4, v5, s8
        s_lshl_b32 s9, s6, 10
        v_lshlrev_b32 v5, 1, v4
        v_add_u32 v6, s9, v5
        global_load_ushort v20, v6, s[16:17]
        global_load_ushort v21, v5, s[34:35]
        s_lshl_b32 s9, s6, 13
        s_add_u32 s9, s9, {ML}
        v_lshl_add_u32 v7, v4, 2, s9
        v_add_u32 v8, {1536*4}, v7""")
        s.poll([f"global_load_dword v22, v7, s[44:45] sc1", f"global_load_dword v23, v8, s[44:45] sc1"],
               [22, 23], vT16, "0xffff", 13, 14)
        a(f"""s_lshl_b32 s9, s6, 3
        s_add_u32 s9, s9, s7
        s_lshl_b32 s9, s9, 11
        s_add_u32 s9, s9, {H4}
        v_and_b32 v7, 60, v4
        v_lshlrev_b32 v7, 2, v7
        v_lshrrev_b32 v8, 2, v2
        v_lshl_add_u32 v7, v8, 9, v7
        v_add_u32 v7, s9, v7
        s_mul_i32 s9, s11, {28*128}
        s_lshl_b32 s10, s10, 6
        s_add_u32 s9, s9, s10
        s_add_u32 s9, s9, {H6}
        v_lshrrev_b32 v8, 2, v1
        v_lshlrev_b32 v8, 7, v8
        v_lshl_add_u32 v9, v9, 4, v8
        v_add_u32 v9, s9, v9
        v_lshlrev_b32 v20, 16, v20
        v_lshlrev_b32 v21, 16, v21
        v_and_b32 v22, s62, v22
        v_and_b32 v23, s62, v23
        s_mov_b32 s56, 0x000f000f
        s_mov_b32 s57, 0x000f000f""")
        a(f"v_mov_b32 v44, 0\nv_mov_b32 v45, 0\nv_mov_b32 v46, 0\nv_mov_b32 v47, v{vT8}")
        s.poll([f"s_sleep {s.o.get('slmini', 1)}", "global_load_dwordx4 v[24:27], v7, s[44:45] sc1", "global_load_dwordx4 v[28:31], v7, s[44:45] offset:256 sc1"],
               [27, 31], vT8, "0xff", 13, 14)
        s.stamp(7)
        a("v_and_b32 v27, s63, v27\nv_and_b32 v31, s63, v31")
        s.pk("add", 24, 24, 28); s.pk("add", 26, 26, 30)
        a("""s_mov_b32 s12, 0xffff0000
        s_mov_b32 s13, 0xffff0000
        v_cndmask_b32 v24, v24, v25, s[12:13]
        v_cndmask_b32 v26, v26, v27, s[12:13]
        s_mov_b32 s12, 0
        s_mov_b32 s13, -1
        v_cndmask_b32 v24, v24, v26, s[12:13]""")
        s.dpp("v_add_f32", 24, 24, 24, "row_ror:4"); s.dpp("v_add_f32", 24, 24, 24, "row_ror:8")
        s.rnd1(24, 24)
        a("v_mul_f32 v24, v22, v24"); s.rnd1(24, 24)
        a("v_add_f32 v24, v20, v24"); s.rnd1(24, 24)
        a("s_mov_b32 s58, -1\ns_mov_b32 s59, 0xffff")
        s.fpoll([("global_load_dwordx4 v[40:43], v9, s[44:45] sc1", 43),
                 ("global_load_dwordx4 v[44:47], v9, s[44:45] offset:2048 sc1", 47)], vT8, s.o.get("sdepth6", 0), full={1: "s[58:59]"})
        s.stamp(8)
        a("v_and_b32 v43, s63, v43\nv_and_b32 v47, s63, v47")
        s.pk("add", 32, 40, 44); s.pk("add", 34, 42, 46)
        a("v_permlane32_swap_b32 v32, v34\nv_permlane32_swap_b32 v33, v35")
        s.pk("add", 32, 32, 34)
        a("v_permlane16_swap_b32 v32, v33\nv_add_f32 v32, v32, v33")
        s.dpp("v_add_f32", 32, 32, 32, "row_ror:4"); s.dpp("v_add_f32", 32, 32, 32, "row_ror:8")
        if s.o.get("eps"): a(f"v_mul_f32 v32, {f32(1 + s.o['eps'])}, v32")
        s.rnd1(32, 32)
        a("v_add_f32 v32, v32, v21"); s.rnd1(32, 32)
        a("v_mul_f32 v32, v23, v32"); s.rnd1(32, 32)
        a("v_add_f32 v32, v24, v32\nv_cvt_pk_bf16_f32 v32, v32, v32")
        a("s_mov_b64 exec, s[56:57]")
        a("global_store_short v6, v32, s[40:41] " + s.o.get("outf", ""))
        s.stamp(9)
        a("s_branch L_end")

    def masks(s):
        s.a("""s_mov_b32 s50, 0x22222222
        s_mov_b32 s51, 0x22222222
        s_mov_b32 s52, 0x44444444
        s_mov_b32 s53, 0x44444444
        s_mov_b32 s54, 0x88888888
        s_mov_b32 s55, 0x88888888""")
    def dma128(s, vbase, tmp, sptr, stride, ts=(0, 1), rowf=None, win=0, fl=' nt'):
        rowf = rowf or (lambda q4, t: 32*(q4 & 1) + 4*(q4 >> 1) + 8*t)
        for n, t in enumerate(ts):
            if n: s.a("s_add_u32 m0, m0, 0x1000")
            for q4 in range(4):
                d = rowf(q4, t)*stride - q4*1024
                assert d >= 0
                if d: s.a(f"v_add_u32 v{tmp}, {d}, v{vbase}")
                if win: s.a(f"s_waitcnt vmcnt({win-1})")
                s.a(f"global_load_lds_dwordx4 v{tmp if d else vbase}, s[{sptr}:{sptr+1}] offset:{q4*1024}{fl}")
    def read128(s, dst, lds_off, ts=(0, 1)):
        for t in ts:
            for ct in range(4):
                for rho in range(2):
                    r = dst + (t*4+ct)*4 + 2*rho
                    s.a(f"ds_read_b64_tr_b16 v[{r}:{r+1}], v{26+ct} offset:{lds_off + t*4096 + rho*2048}")
    def gemv4(s, W, F0, A0, ts=(0, 1)):
        for t in ts:
            for ct in range(4): s.mfma(A0+4*ct, W+16*t+4*ct, F0+4*t, A0+4*ct if t else None)
    def compact4(s, AC):
        for ct in range(1, 4):
            for k in range(4): s.a(f"v_cndmask_b32 v{AC+k}, v{AC+k}, v{AC+4*ct+k}, s[{48+2*ct}:{49+2*ct}]")
    def finish(s, AC, R, after):
        s.compact4(AC)
        s.a(f"""s_cmp_ge_u32 s3, 4
        ds_write_b128 v30, v[{AC}:{AC+3}]
        s_waitcnt lgkmcnt(0)
        s_barrier
        s_cbranch_scc1 {after}""")
        for u in range(4): s.a(f"ds_read2st64_b32 v[{R+2*u}:{R+2*u+1}], v31 offset0:{10*u} offset1:{10*u+5}")
        s.a("s_waitcnt lgkmcnt(2)"); s.pk("add", R, R, R+2)
        s.a("s_waitcnt lgkmcnt(0)"); s.pk("add", R+4, R+4, R+6); s.pk("add", R, R, R+4)
        s.a(f"v_add_f32 v{R}, v{R}, v{R+1}")
    def bf16_tagged(s, R, tag):
        s.a(f"""v_cvt_pk_bf16_f32 v{R}, v{R}, v{R}
        v_and_or_b32 v{R}, v{R}, s62, v{tag}""")
    def trigger(s, kind, local=False, sleep=2):
        if not kind: return
        L = s.lab("TR"); Lp = s.lab("TP")
        s.a(f"s_cmp_lg_u32 s3, 0\ns_cbranch_scc1 {L}")
        if kind == "q":
            need = 16
            s.a(f"""v_and_b32 v20, 7, v1
            s_lshl_b32 s6, s4, 13
            s_add_u32 s6, s6, {H2A + ALT}
            v_lshl_add_u32 v20, v20, 8, s6""")
        else:
            need = int(kind[1:] or 16)
            s.a(f"""s_lshl_b32 s6, s4, 11
            s_add_u32 s6, s6, {ML3A + (0 if local else ALT) + (64 if kind[0] == 'p' else 0)}
            v_lshl_add_u32 v20, v2, 7, s6""")
        s.a(f"""s_mov_b64 exec, 0xffff
        s_mov_b32 s66, 0
        {Lp}:
        s_add_u32 s66, s66, 1
        s_cmp_gt_u32 s66, {LIMIT}
        s_cbranch_scc1 L_end
        s_cmp_eq_u32 s66, 300
        s_cselect_b32 s6, {ALT if local else 0}, 0
        v_add_u32 v20, s6, v20
        s_sleep {sleep}
        global_load_dwordx4 v[220:223], v20, s[44:45] sc1
        s_waitcnt vmcnt(0)""")
        s.tagacc(21, [220, 221, 222, 223], vT8)
        s.a(f"""v_and_b32 v21, 0xff, v21
        v_cmp_eq_u32 vcc, 0, v21
        s_bcnt1_i32_b64 s6, vcc
        s_cmp_lt_u32 s6, {need}
        s_cbranch_scc1 {Lp}
        s_mov_b64 exec, -1
        {L}:
        s_barrier""")

    def spoll(s, items, tag, mask, acc, depth, sm=6, slow=None, thr=LIMIT, init_exec=None, sleep=0, first_issued=False):
        Lp = s.lab("S"); Lc = s.lab("Sc"); n = len(items)
        def issue():
            if sleep: s.a(f"s_sleep {sleep}")
            for k, (l, r) in enumerate(items):
                s.a(f"s_mov_b64 exec, s[{sm+2*k}:{sm+2*k+1}]")
                s.a(l)
            s.a(f"s_mov_b64 exec, -1\ns_add_u32 s66, s66, 1\ns_cmp_gt_u32 s66, {thr}\ns_cbranch_scc1 {slow or 'L_end'}")
        if first_issued:
            s.a(f"s_mov_b32 s66, 0\n{Lc}:")
            main = s.L; s.L = []
            s.a(f"{Lp}:"); issue(); s.a(f"s_branch {Lc}")
            s.ool += s.L; s.L = main
        else:
            for k, (l, r) in enumerate(items):
                ie = (init_exec or {}).get(k)
                if ie: s.a(f"s_mov_b32 s{sm+2*k}, {ie[0]}\ns_mov_b32 s{sm+2*k+1}, {ie[1]}")
                else: s.a(f"s_mov_b64 s[{sm+2*k}:{sm+2*k+1}], -1")
                if depth:
                    s.a(f"v_not_b32 v{r[0]}, v{tag}") if not ie else s.a(f"s_mov_b64 exec, s[{sm+2*k}:{sm+2*k+1}]\nv_not_b32 v{r[0]}, v{tag}\ns_mov_b64 exec, -1")
            s.a(f"s_mov_b32 s66, 0\n{Lp}:")
            issue()
        s.a(f"s_waitcnt vmcnt({depth*n})")
        for k, (l, r) in enumerate(items): s.a(f"v_xor_b32 v{acc+k}, v{r[0]}, v{tag}")
        for i in range(1, len(items[0][1])):
            for k, (l, r) in enumerate(items): s.a(f"v_bitop3_b32 v{acc+k}, v{acc+k}, v{r[i]}, v{tag} bitop3:0xf6")
        for k in range(n): s.a(f"v_and_b32 v{acc+k}, {mask}, v{acc+k}")
        for k in range(n): s.a(f"v_cmp_ne_u32 s[{sm+2*k}:{sm+2*k+1}], 0, v{acc+k}")
        if n == 1: s.a(f"s_cmp_lg_u64 s[{sm}:{sm+1}], 0")
        else:
            s.a(f"s_or_b64 vcc, s[{sm}:{sm+1}], s[{sm+2}:{sm+3}]")
            for k in range(2, n): s.a(f"s_or_b64 vcc, vcc, s[{sm+2*k}:{sm+2*k+1}]")
        s.a(f"s_cbranch_scc1 {Lp}")

    def fpoll(s, items, tag, depth=0, sm=6, slow=None, thr=LIMIT, full=None, first_issued=False, lane=False, alt=None):
        Lp = s.lab("G"); Lc = s.lab("Gc"); n = len(items); full = full or {}
        if not first_issued:
            for k, (l, r) in enumerate(items):
                if k in full: s.a(f"s_mov_b64 exec, {full[k]}")
                s.a(l)
                if k in full: s.a("s_mov_b64 exec, -1")
        s.a(f"s_mov_b32 s66, 0\ns_waitcnt vmcnt(0)\ns_branch {Lc}\n{Lp}:")
        for k, (l, r) in enumerate(items):
            if lane: s.a(f"s_mov_b64 exec, s[{sm+2*k}:{sm+2*k+1}]")
            else: s.a(f"s_cmp_lg_u64 s[{sm+2*k}:{sm+2*k+1}], 0\ns_cselect_b64 exec, {full.get(k, '-1')}, 0")
            s.a(l)
        if alt is not None:
            slow = s.lab("Gs"); back = s.lab("Gb")
            s.ool += [f"{slow}:", f"s_cmp_gt_u32 s66, {LIMIT}", "s_cbranch_scc1 L_end", f"v_or_b32 v{alt}, {ALT}, v{alt}", f"s_branch {back}"]
        s.a(f"s_mov_b64 exec, -1\ns_add_u32 s66, s66, 1\ns_cmp_gt_u32 s66, {thr}\ns_cbranch_scc1 {slow or 'L_end'}")
        if alt is not None: s.a(f"{back}:")
        s.a(f"s_waitcnt vmcnt({depth*n})\n{Lc}:")
        for k, (l, r) in enumerate(items):
            s.a(f"v_cmp_ne_u32_sdwa s[{sm+2*k}:{sm+2*k+1}], v{r}, v{tag} src0_sel:BYTE_0 src1_sel:BYTE_0")
        s.a(f"s_or_b64 vcc, s[{sm}:{sm+1}], s[{sm+2}:{sm+3}]")
        for k in range(2, n): s.a(f"s_or_b64 vcc, vcc, s[{sm+2*k}:{sm+2*k+1}]")
        s.a(f"s_cbranch_scc1 {Lp}")

    def spinner(s, label, wmax, vcnt, n, extra):
        s.a(f"""{label}:
        s_cmp_ge_u32 s3, {wmax}
        s_cbranch_scc1 L_end
        s_setprio 0
        s_mov_b32 s66, 0
        s_mov_b32 s6, 0
        {label}_l:
        ds_read_b32 v20, v{vcnt}""")
        for k in range(64): s.a("v_mov_b32 v21, v22")
        s.a(f"""s_waitcnt lgkmcnt(0)
        v_readfirstlane_b32 s7, v20
        s_add_u32 s66, s66, 1
        s_cmp_gt_u32 s66, {LIMIT}
        s_cbranch_scc1 L_end
        s_cmp_ge_u32 s7, {n}
        s_addc_u32 s6, s6, 0
        s_cmp_le_u32 s6, {extra}
        s_cbranch_scc1 {label}_l
        s_branch L_end""")

    def touch(s, ptrs):
        a = s.a
        L = s.lab("TL")
        a(f"v_lshlrev_b32 v15, 19, v1\ns_cmp_lg_u32 s3, 7\ns_cbranch_scc1 {L}")
        for p, n in ptrs:
            a(f"s_mov_b64 exec, {(1 << n) - 1}\nglobal_load_dword v240, v15, s[{p}:{p+1}] nt")
        a(f"s_mov_b64 exec, -1\n{L}:")
    def t_common(s, ptrs=()):
        a = s.a
        s.consts(); s.masks()
        a(f"""s_mov_b32 s58, 0x00ff00ff
        s_mov_b32 s59, 0x00ff00ff
        v_lshrrev_b32 v15, 2, v1
        v_lshl_add_u32 v18, v12, 5, s14
        v_lshl_add_u32 v26, v15, 7, v18
        v_bfe_u32 v19, v1, 3, 1
        v_lshl_add_u32 v26, v19, 4, v26
        v_xor_b32 v27, 8, v26
        v_xor_b32 v28, 16, v26
        v_xor_b32 v29, 24, v26
        s_mul_i32 s6, s3, 1280
        s_add_u32 s6, s6, {SCR}
        v_mul_u32_u24 v31, 320, v3
        v_lshl_add_u32 v30, v2, 4, v31
        v_add_u32 v30, s6, v30
        s_lshl_b32 s6, s3, 6
        s_add_u32 s6, s6, {SCR}
        v_lshl_add_u32 v31, v2, 2, v31
        v_add_u32 v31, s6, v31""")

    def path_T(s):
        a = s.a
        WA, WB = 128, 160
        F0, AC, R, D = 96, 104, 64, 40
        SST, SS2 = SCR+10752, SCR+10880
        ep = f"s_load_dword s48, s[44:45], {EPOCH}"
        cl = "global_load_dwordx2 v[16:17], v13, s[36:37] " + s.o.get("smallf", "")
        e3 = s.o.get("early3")
        tlanes = """s_sub_u32 s5, s5, 16
        v_and_b32 v6, 1, v3
        v_xor_b32 v6, v6, v1
        v_and_b32 v6, 7, v6
        v_lshlrev_b32 v6, 4, v6
        v_bfe_u32 v7, v1, 3, 2
        v_lshrrev_b32 v9, 5, v1
        v_lshl_add_u32 v4, v9, 4, v7
        v_lshrrev_b32 v11, 2, v2
        v_and_b32 v12, 3, v1
        v_lshlrev_b32 v10, 2, v12
        v_lshl_add_u32 v10, v3, 4, v10
        v_lshlrev_b32 v13, 10, v11
        v_lshl_add_u32 v13, v10, 1, v13
        s_lshl_b32 s6, s3, 7
        v_add_u32 v13, s6, v13
"""
        if e3:
            a(".p2align 6\nL_T:\ns_cmp_ge_u32 s2, 0x100\ns_cbranch_scc1 L_exit")
            if s.o.get("coop"): a("s_and_b32 s6, s2, 32\ns_lshl_b32 s6, s6, 3\nv_xor_b32 v0, s6, v0")
            s.lanes(False)
            if s.o.get("cpf") == "F":
                a("""s_cmp_lt_u32 s2, 0xe0
                s_cbranch_scc1 L_F_ncp
                s_getpc_b64 s[8:9]
                L_pc0:
                s_sub_u32 s8, s8, L_pc0-L_k0
                s_subb_u32 s9, s9, 0
                v_lshlrev_b32 v4, 5, v0
                v_and_b32 v4, 0xffffff80, v4
                v_min_u32 v4, L_exit-L_k0, v4
                global_load_dword v255, v4, s[8:9]
                L_F_ncp:""")
            a(tlanes)
        else:
            a("L_T:"); a(tlanes); a("s_cmp_lt_u32 s5, 8\ns_cbranch_scc1 L_W")
        a("s_sub_u32 s5, s5, 8")
        LX = s.o.get("lightx", 7)
        if s.o.get("mswap"):
            a("""s_lshr_b32 s6, s5, 2
            s_lshl_b32 s6, s6, 1
            s_cmp_eq_u32 s4, s6
            s_cselect_b32 s71, 2, 0
            s_xor_b32 s4, s4, s71
            s_lshl_b32 s6, s71, 1
            s_xor_b32 s5, s5, s6""")
        if s.o.get("lperm"):
            lateoff = f"s_lshl_b32 s7, s5, 3\ns_xor_b32 s8, s4, {3 ^ LX}\ns_add_u32 s7, s7, s8\ns_lshl_b32 s7, s7, 7\ns_sub_u32 s7, s7, 2048"
        else:
            lateoff = f"s_lshl_b32 s7, s4, 2\ns_add_u32 s7, s7, s5\ns_lshl_b32 s7, s7, 7\ns_add_u32 s7, s7, {2048 - 512}"
        a(f"""s_movk_i32 s7, 6144
        v_mad_u32_u24 v8, v4, s7, v6
        s_and_b32 s6, s5, 1
        s_lshl_b32 s6, s6, 10
        s_lshl_b32 s7, s4, 7
        s_add_u32 s6, s6, s7
        {lateoff}
        s_and_b32 s8, s5, 2
        s_cmp_lt_u32 s5, 4
        s_cselect_b32 s15, s6, s7
        s_cselect_b32 s8, s8, 0
        s_lshl_b32 s9, s8, 3
        v_xor_b32 v13, s9, v13
        s_lshl_b32 s8, s8, 2
        s_lshl_b32 s9, s3, 6
        s_add_u32 s8, s8, s9
        s_mul_i32 s8, s8, 6144
        s_add_u32 s8, s8, s15
        s_waitcnt lgkmcnt(0)
        {"" if s.o.get("late_ep") == 2 else ep}
        {"" if s.o.get("late_c") else cl}
        s_add_u32 s10, s38, s8
        s_addc_u32 s11, s39, 0""")
        s.stamp(1)
        hmt = ""
        if s.o.get("hmt"):
            hmt = f"s_lshl_b32 s8, s4, 12\ns_and_b32 s9, s5, 3\ns_lshl_b32 s9, s9, 10\ns_add_u32 s8, s8, s9\ns_lshl_b32 s9, s3, 7\ns_add_u32 s8, s8, s9\ns_add_u32 s8, s8, {HM}\nv_and_b32 v21, 31, v1\nv_lshl_add_u32 v21, v21, 2, s8\nglobal_load_dword v244, v21, s[44:45] sc1"
        if s.o.get("pfm"):
            a(f"""s_cmp_lt_u32 s5, 4
            s_cbranch_scc1 L_F_pf
            s_and_b32 s8, s5, 2
            s_lshl_b32 s8, s8, 2
            s_lshl_b32 s9, s3, 5
            s_add_u32 s8, s8, s9
            s_add_u32 s8, s8, 256
            s_mul_i32 s8, s8, 6144
            s_add_u32 s8, s8, s6
            v_lshrrev_b32 v20, 3, v1
            v_mul_u32_u24 v20, 6144, v20
            v_and_b32 v21, 7, v1
            v_lshl_add_u32 v20, v21, 4, v20
            v_add_u32 v20, s8, v20
            global_load_dwordx4 v[240:243], v20, s[38:39] nt
            v_add_u32 v20, {16*6144}, v20
            global_load_dwordx4 v[240:243], v20, s[38:39] nt
            {hmt}
            {"s_waitcnt vmcnt(0)" if s.o.get("fl_wait") else ""}
            {"s_barrier" if s.o.get("fl_wait") == 2 else ""}
            L_F_pf:""")
        ml_trig = s.o.get("ml_trig")
        if ml_trig:
            a("s_cmp_lt_u32 s5, 4\ns_cbranch_scc1 L_F_d0\ns_waitcnt lgkmcnt(0)")
            s.consts(); s.tags(); s.trigger(ml_trig)
            a("L_F_d0:")
        if s.o.get("late_c"):
            main = s.L; s.L = []
            s.dma128(8, 15, 10, 6144, ts=(0,))
            body = s.L; s.L = main
            k2 = [i for i, l in enumerate(body) if l.startswith("global_load_lds")][s.o["late_c"] - 1]
            for l in body[:k2+1] + [cl] + body[k2+1:]: a(l)
        else: s.dma128(8, 15, 10, 6144, ts=(0,))
        a("s_cmp_lt_u32 s5, 4\ns_cbranch_scc1 L_F_d1\ns_add_u32 m0, m0, 0x1000")
        s.dma128(8, 15, 10, 6144, ts=(1,), win=s.o.get("mwin", 0))
        a("L_F_d1:")
        a("@SPLIT F")
        s.t_common([(28, 4), (32, 4), (44, 3), (30, 1), (16, 1)])
        a(f"s_waitcnt vmcnt({4 - s.o.get('late_c', 0)})")
        if s.o.get("late_ep") == 2: a(ep)
        s.unpack(40, 41, 16); s.unpack(42, 43, 17)
        for k in range(4): a(f"v_mul_f32 v{44+k}, s64, v{40+k}")
        for k in range(4): a(f"v_exp_f32 v{44+k}, -v{44+k}")
        for k in range(4): a(f"v_add_f32 v{44+k}, 1.0, v{44+k}")
        for k in range(4): a(f"v_rcp_f32 v{44+k}, v{44+k}")
        for k in range(4): a(f"v_mul_f32 v{40+k}, v{40+k}, v{44+k}")
        a("v_cvt_pk_bf16_f32 v16, v40, v41\nv_cvt_pk_bf16_f32 v17, v42, v43")
        s.frag_quad(F0, 16, 17)
        a(f"""s_and_b32 s6, s5, 1
        s_lshl_b32 s6, s6, 1
        s_lshr_b32 s7, s5, 1
        s_add_u32 s6, s6, s7
        s_lshl_b32 s6, s6, 10
        s_lshl_b32 s7, s4, 12
        s_add_u32 s6, s6, s7
        s_add_u32 s6, s6, {HM}
        v_lshl_add_u32 v50, v0, 2, s6
        s_lshl_b32 s6, s15, 1
        s_lshl_b32 s7, s3, 13
        s_add_u32 s6, s6, s7
        s_add_u32 s6, s6, {ML - 4096}
        v_lshl_add_u32 v51, v1, 2, s6
        s_waitcnt lgkmcnt(0)""")
        s.tags()
        a("s_waitcnt vmcnt(0)")
        s.stamp(2)
        s.read128(WA, 0, ts=(0,))
        a("s_waitcnt lgkmcnt(0)")
        s.gemv4(WA, F0, AC, ts=(0,))
        a("s_cmp_ge_u32 s5, 4\ns_cbranch_scc1 L_F_m2\nL_F_m1:")
        main = s.L; s.L = []
        a("L_F_m2:")
        s.read128(WA, 0, ts=(1,))
        a("s_waitcnt lgkmcnt(0)")
        s.gemv4(WA, F0, AC, ts=(1,))
        a("s_branch L_F_m1")
        a("L_F_late:")
        s.bf16_tagged(R, vT16)
        a(f"global_store_dword v51, v{R}, s[44:45] sc1\ns_branch L_F_m3")
        s.ool += s.L; s.L = main
        s.finish(AC, R, "L_F_m3")
        a("s_cmp_ge_u32 s5, 4\ns_cbranch_scc1 L_F_late")
        a(f"v_bfi_b32 v{R}, 3, v{vT8}, v{R}")
        a(f"global_store_dword v50, v{R}, s[44:45] sc1\nL_F_m3:")
        s.stamp(3)
        if s.o.get("fe_touch"):
            a(f"""s_cmp_ge_u32 s5, 4
            s_cbranch_scc1 L_F_nt
            s_barrier
            s_lshl_b32 s6, s4, 15
            s_lshl_b32 s7, s5, 13
            s_add_u32 s6, s6, s7
            s_add_u32 s6, s6, {H3A}
            v_lshl_add_u32 v20, v0, 4, s6
            s_lshl_b32 s6, s4, 13
            s_lshl_b32 s7, s5, 11
            s_add_u32 s6, s6, s7
            s_add_u32 s6, s6, {H2A}
            v_lshl_add_u32 v21, v0, 2, s6
            global_load_dword v240, v21, s[44:45] sc1
            global_load_dwordx4 v[240:243], v20, s[44:45] sc1""")
            vp = s.o.get("vpf")
            if vp is not None:
                wlo = s.o.get("vpf_w", 0)
                assert s.o.get("kvmap") == 3
                a(f"""s_cmp_lt_u32 s3, {wlo}
                s_cbranch_scc1 L_F_nt
                s_lshl_b32 s6, s5, 3
                s_add_u32 s6, s6, s4
                s_lshl_b32 s6, s6, 21
                s_add_u32 s6, s6, 0x180000
                s_lshl_b32 s7, s5, 2
                s_add_u32 s7, s7, s4
                s_lshl_b32 s12, s3, 2
                v_lshlrev_b32 v20, 4, v1""")
                for gq in s.o.get("vpf_g", (3,)):
                    for sg in range(4):
                        a(f"""s_add_u32 s8, s7, {sg}
                        s_and_b32 s8, s8, 7
                        s_xor_b32 s8, s8, s12
                        s_xor_b32 s8, s8, {gq + 32*sg}
                        s_lshl_b32 s8, s8, 12
                        s_add_u32 s8, s8, s6
                        v_add_u32 v21, s8, v20""")
                        for j in range(4): a(f"global_load_dwordx4 v[240:243], v21, s[20:21] offset:{1024*j} {vp}")
            a("L_F_nt:")
        if s.o.get("mswap"): a("s_xor_b32 s4, s4, s71\ns_lshl_b32 s6, s71, 1\ns_xor_b32 s5, s5, s6")
        a(f"s_cmp_eq_u32 s4, {LX}\ns_cbranch_scc1 L_F_spare")
        a("s_and_b32 s70, s5, 1\ns_lshr_b32 s15, s5, 1" if s.o.get("pairs") else "s_lshr_b32 s70, s5, 2\ns_and_b32 s15, s5, 3")
        a(f"""        s_xor_b32 s6, s4, {LX ^ 7}
        s_lshl_b32 s6, s6, 2
        s_add_u32 s15, s15, s6
        s_movk_i32 s7, 3584
        v_mad_u32_u24 v8, v4, s7, v6
        v_lshl_add_u32 v7, v4, 10, v6
        s_mul_i32 s6, s3, {64*3584}
        s_lshl_b32 s7, s15, 7
        s_add_u32 s6, s6, s7
        s_add_u32 s10, s28, s6
        s_addc_u32 s11, s29, 0
        s_lshl_b32 s6, s15, 16
        s_lshl_b32 s7, s3, 7
        s_add_u32 s6, s6, s7
        s_add_u32 s12, s32, s6
        s_addc_u32 s13, s33, 0
        s_add_u32 m0, s14, 8192
        s_barrier""")
        if s.o.get("tlbT"): s.touch([(28, 4), (32, 4), (24, 8)])
        def ffn_dma():
            s.trigger(s.o.get("w1_trig"))
            s.dma128(8, 15, 10, 3584)
            s.trigger(s.o.get("w2_trig"))
            if s.o.get("coop") and not s.o.get("w2_trig"): a("s_barrier")
            a("s_mov_b32 m0, s14")
            s.dma128(7, 15, 12, 1024)
        mlf = s.o.get("ml_first", 0)
        if not mlf: ffn_dma()
        XR, GA, GM, XG, C1, C2, PVT = 192, 196, 200, 204, 208, 210, 244
        WC = 64
        a(f"""v_bfe_u32 v43, v1, 2, 1
        v_bfe_u32 v42, v1, 3, 1
        s_lshl_b32 s6, s3, 6
        v_add_u32 v40, s6, v10
        s_lshl_b32 s8, s70, 11
        v_lshl_add_u32 v44, v43, 10, s8
        v_lshl_add_u32 v41, v40, 1, v44
        global_load_dwordx2 v[16:17], v41, s[16:17]
        global_load_dwordx2 v[22:23], v44, s[16:17]
        s_lshl_b32 s8, s70, 14
        s_add_u32 s8, s8, {ML + 2048}
        v_lshlrev_b32 v41, 13, v43
        v_lshl_add_u32 v41, v40, 2, v41
        v_add_u32 v41, s8, v41
        s_lshl_b32 s8, s70, 15
        s_lshl_b32 s9, s3, 11
        s_add_u32 s8, s8, s9
        s_add_u32 s8, s8, {H4}
        v_lshlrev_b32 v212, 14, v43
        v_lshl_add_u32 v212, v42, 8, v212
        v_lshl_add_u32 v212, v10, 2, v212
        v_add_u32 v212, s8, v212
        v_and_b32 v46, 0x38, v1
        v_lshl_add_u32 v46, v12, 1, v46
        s_lshl_b32 s8, s15, 7
        v_lshl_add_u32 v47, v46, 1, s8
        global_load_dword v18, v47, s[30:31]
        v_mul_u32_u24 v213, 320, v3
        v_lshl_add_u32 v213, v43, 6, v213
        v_and_b32 v47, 15, v46
        v_lshl_add_u32 v213, v47, 2, v213
        v_add_u32 v213, {SCR}, v213
        v_lshlrev_b32 v214, 6, v43
        v_add_u32 v214, {SS2}, v214
        v_lshl_add_u32 v215, v42, 5, v214
        v_lshl_add_u32 v215, v12, 3, v215
        s_lshl_b32 s7, s3, 3
        v_and_b32 v217, 1, v3
        v_lshl_add_u32 v217, v217, 2, v214
        v_add_u32 v217, s7, v217
        s_lshl_b32 s8, s70, 5
        s_lshl_b32 s9, s3, 2
        s_add_u32 s8, s8, s9
        s_mul_i32 s8, s8, 28
        s_add_u32 s8, s8, s15
        s_lshl_b32 s8, s8, 7
        s_add_u32 s8, s8, {H6}
        v_and_b32 v47, 7, v1
        v_mul_u32_u24 v216, {28*128}, v3
        v_lshl_add_u32 v216, v47, 4, v216
        v_add_u32 v216, s8, v216
        v_add_u32 v219, {16*28*128}, v216
        v_mov_b32 v245, 0
        s_mov_b32 s56, 0xff00ff00
        s_mov_b32 s57, 0xff00ff00""")
        mll = [f"global_load_dwordx4 v[{GA}:{GA+3}], v41, s[44:45] offset:-2048 sc1",
               f"global_load_dwordx4 v[48:51], v41, s[44:45] sc1",
               f"global_load_dwordx4 v[{GM}:{GM+3}], v41, s[44:45] offset:2048 sc1"]
        mlr = list(range(GA, GA+4)) + [48, 49, 50, 51] + list(range(GM, GM+4))
        if mlf == 2:
            a("s_waitcnt vmcnt(0)\nv_mov_b32 v246, v22\nv_mov_b32 v247, v23")
            if s.o.get("fe_go"): a("s_cmp_lt_u32 s5, 4\ns_cbranch_scc1 L_F_go")
            s.trigger(s.o.get("w1_trig"))
            if s.o.get("fe_go"): a("L_F_go:")
            n1_ = s.o.get("pfw1", 0)
            if n1_:
                a(f"""s_cmp_ge_u32 s3, {n1_}
                s_cbranch_scc1 L_F_pw
                s_mul_i32 s6, s5, {n1_}
                s_add_u32 s6, s6, s3
                s_lshl_b32 s6, s6, 4
                s_bfe_u32 s7, s15, 0x10002
                s_add_u32 s6, s6, s7
                s_add_u32 s6, s6, {512 - 128*n1_}
                s_mul_i32 s6, s6, 3584
                s_or_b32 s7, s15, 3
                s_lshl_b32 s7, s7, 7
                s_add_u32 s6, s6, s7
                v_lshrrev_b32 v20, 3, v1
                v_mul_u32_u24 v20, 7168, v20
                v_and_b32 v21, 7, v1
                v_lshl_add_u32 v20, v21, 4, v20
                v_add_u32 v20, s6, v20
                global_load_dwordx4 v[240:243], v20, s[28:29] nt
                L_F_pw:""")
            s.dma128(8, 15, 10, 3584, win=s.o.get("fwin", 0), fl=s.o.get("ffl", " nt"))
            a("s_barrier")
            if s.o.get("fwin"):
                a("s_mov_b32 m0, s14")
                s.dma128(7, 15, 12, 1024, ts=(0,), win=s.o["fwin"])
                for l in mll: a(l)
                a("s_add_u32 m0, m0, 0x1000")
                s.dma128(7, 15, 12, 1024, ts=(1,))
            else:
                s.trigger(s.o.get("w2_trig"))
                for l in mll: a(l)
                a("s_mov_b32 m0, s14")
                s.dma128(7, 15, 12, 1024, fl=s.o.get("ffl", " nt"))
            a("v_mov_b32 v22, v246\nv_mov_b32 v23, v247")
            s.poll(mll, mlr, vT16, "0xffff", 14, 15, first_issued=True, first_wait=4 if s.o.get("fwin") else 8)
        else:
            s.poll((["s_sleep 4"] if mlf else []) + mll, mlr, vT16, "0xffff", 14, 15)
        if mlf == 1:
            a("v_mov_b32 v246, v22\nv_mov_b32 v247, v23")
            ffn_dma()
            a("v_mov_b32 v22, v246\nv_mov_b32 v23, v247")
        elif not mlf:
            s.read128(WA, 8192)
            s.read128(WB, 0)
        for r in list(range(GA, GA+4)) + list(range(GM, GM+4)): a(f"v_and_b32 v{r}, s62, v{r}")
        for k in range(4): a(f"v_add_f32 v{GM+k}, 1.0, v{GM+k}")
        s.rnd2(GM, GM+1, 52); s.rnd2(GM+2, GM+3, 53)
        s.unpack(XR, XR+1, 16); s.unpack(XR+2, XR+3, 17)
        s.unpack(20, 21, 22)
        a(f"""v_lshlrev_b32 v22, 16, v23
        v_med3_f32 v{PVT}, v20, v21, v22
        v_perm_b32 v54, v49, v48, s60
        v_perm_b32 v55, v51, v50, s60
        v_cndmask_b32 v52, v52, v54, s[56:57]
        v_cndmask_b32 v53, v53, v55, s[56:57]""")
        s.frag_quad(F0, 52, 53)
        for k in range(4): a(f"v_sub_f32 v{XR+k}, v{XR+k}, v{PVT}")
        for o in (0, 2): s.pk("mul", XG+o, XR+o, GM+o)
        for o in (0, 2): s.pk("mul", GM+o, GM+o, GA+o)
        if mlf:
            a("s_waitcnt vmcnt(8)")
            s.read128(WA, 8192)
        a("s_waitcnt lgkmcnt(0)")
        s.gemv4(WA, F0, AC)
        s.compact4(AC)
        a(f"ds_write_b128 v30, v[{AC}:{AC+3}]\ns_waitcnt lgkmcnt(0)\ns_barrier")
        a(f"ds_read2_b64 v[{R}:{R+3}], v213 offset0:0 offset1:16")
        for u in range(1, 8):
            a(f"ds_read_b64 v[{R+4*u}:{R+4*u+1}], v213 offset:{u*1280}")
            a(f"ds_read_b64 v[{R+4*u+2}:{R+4*u+3}], v213 offset:{u*1280+128}")
        s.unpack(C2, C2+1, 18)
        a("s_waitcnt lgkmcnt(0)")
        s.pk("add", C1, R, R+4); s.pk("add", C2, C2, R+2); s.pk("add", C2, C2, R+6)
        for u in range(2, 8):
            s.pk("add", C1, C1, R+4*u); s.pk("add", C2, C2, R+4*u+2)
        P = 224
        h4l = [(f"global_load_dwordx4 v[{P+4*u}:{P+4*u+3}], v212, s[44:45] offset:{512*u} sc1", P+4*u+3) for u in range(4)]
        pig = s.o.get("pig", 0)
        if mlf:
            if pig:
                for l, _ in h4l: a(l)
            a(f"s_waitcnt vmcnt({4 if pig else 0})\ns_barrier\ns_cmp_ge_u32 s3, 4\ns_cbranch_scc1 L_F_rdy")
            s.read128(WB, 0)
        for k in range(4): a(f"v_xor_b32 v{26+k}, 0x10000, v{26+k}")
        s.read128(WC, 0)
        if mlf: a("L_F_rdy:")
        else: a("s_waitcnt lgkmcnt(0)\ns_barrier")
        s.stamp(6)
        s.trigger(s.o.get("h4_trig"))
        a("s_setprio 2")
        P = 224
        sd = s.o.get("sdepth", 0)
        s.fpoll(h4l, vT8, sd, first_issued=bool(pig))
        s.stamp(9); s.cy("F", 0)
        for u in range(4): a(f"v_and_b32 v{P+4*u+3}, s63, v{P+4*u+3}")
        for o in (0, 2, 8, 10): s.pk("add", D+o, P+o, P+o+4)
        for o in (0, 2): s.pk("add", D+o, D+o, D+o+8)
        for k in range(4): s.dpp("v_add_f32", D+k, D+k, D+k, "row_ror:8")
        for o in (0, 2): s.pk("fma", D+6+o, D+o, GM+o, XG+o)
        a(f"v_cvt_pk_bf16_f32 v{D+6}, v{D+6}, v{D+7}\nv_cvt_pk_bf16_f32 v{D+7}, v{D+8}, v{D+9}")
        for o in (0, 2): s.pk("fma", D+o, D+o, GA+o, XR+o)
        s.frag_quad(F0, D+6, D+7)
        s.cy("F", 1)
        if s.o.get("dprio"): a("s_setprio 0")
        s.gemv4(WA, F0, AC, ts=(0,))
        s.pk("add", D+10, D, D+2); s.pk("mul", D+12, D, D)
        s.pk("fma", D+12, D+2, D+2, D+12)
        a(f"v_add_f32 v{D+10}, v{D+10}, v{D+11}")
        mm = [lambda ct=ct: s.mfma(AC+4*ct, WA+16+4*ct, F0+4, AC+4*ct) for ct in range(4)]
        mm[0]()
        a(f"v_add_f32 v{D+12}, v{D+12}, v{D+13}")
        s.dpp("v_add_f32", D+10, D+10, D+10, "quad_perm:[1,0,3,2]")
        mm[1]()
        s.dpp("v_add_f32", D+12, D+12, D+12, "quad_perm:[1,0,3,2]")
        s.dpp("v_add_f32", D+10, D+10, D+10, "quad_perm:[2,3,0,1]")
        mm[2]()
        s.dpp("v_add_f32", D+12, D+12, D+12, "quad_perm:[2,3,0,1]")
        mm[3]()
        s.cy("F", 2)
        a(f"v_permlane16_swap_b32 v{D+10}, v{D+12}\nv_add_f32 v{D+10}, v{D+10}, v{D+12}")
        a(f"v_mov_b32 v{D+12}, v{D+10}")
        for k in range(4): a(f"v_cndmask_b32 v{AC+k}, v{AC+k}, v{AC+4+k}, s[50:51]")
        a(f"v_permlane32_swap_b32 v{D+10}, v{D+12}\nv_add_f32 v{D+10}, v{D+10}, v{D+12}")
        a(f"ds_write_b32 v217, v{D+10}")
        for ct in (2, 3):
            for k in range(4): a(f"v_cndmask_b32 v{AC+k}, v{AC+k}, v{AC+4*ct+k}, s[{48+2*ct}:{49+2*ct}]")
        s.cy("F", 3)
        Z = 32
        a(f"""s_cmp_ge_u32 s3, 4
        ds_write_b128 v30, v[{AC}:{AC+3}]
        s_waitcnt lgkmcnt(0)
        s_barrier
        s_cbranch_scc1 L_end
        ds_read_b64 v[{Z+2}:{Z+3}], v215""")
        for u in range(8): a(f"ds_read_b64 v[{D+2*u}:{D+2*u+1}], v213 offset:{u*1280}")
        a("s_waitcnt lgkmcnt(8)")
        s.cy("F", 4)
        s.dpp("v_add_f32", Z+2, Z+2, Z+2, "quad_perm:[1,0,3,2]"); s.dpp("v_add_f32", Z+3, Z+3, Z+3, "quad_perm:[1,0,3,2]")
        a(f"s_waitcnt lgkmcnt(6)"); s.pk("add", D, D, D+2)
        s.dpp("v_add_f32", Z+2, Z+2, Z+2, "quad_perm:[2,3,0,1]"); s.dpp("v_add_f32", Z+3, Z+3, Z+3, "quad_perm:[2,3,0,1]")
        a(f"s_waitcnt lgkmcnt(4)"); s.pk("add", D+4, D+4, D+6)
        s.dpp("v_add_f32", Z+2, Z+2, Z+2, "row_ror:8"); s.dpp("v_add_f32", Z+3, Z+3, Z+3, "row_ror:8")
        s.pk("add", D, D, D+4)
        a(f"""v_mul_f32 v{Z+2}, {f32(1/512)}, v{Z+2}
        v_mul_f32 v{Z+3}, {f32(1/512)}, v{Z+3}
        v_fma_f32 v{Z+6}, -v{Z+2}, v{Z+2}, v{Z+3}
        v_add_f32 v{Z+4}, v{PVT}, v{Z+2}
        v_max_f32 v{Z+6}, 0, v{Z+6}""")
        s.cy("F", 5)
        a(f"""v_cvt_pk_bf16_f32 v{Z+6}, v{Z+4}, v{Z+6}""")
        a(f"""v_lshlrev_b32 v{Z+4}, 16, v{Z+6}
        v_and_b32 v{Z+6}, s62, v{Z+6}
        v_add_f32 v{Z+6}, {f32(1e-5)}, v{Z+6}""")
        s.rnd1(Z+6, Z+6)
        a(f"v_sqrt_f32 v{Z+6}, v{Z+6}\nv_sub_f32 v{Z+4}, v{PVT}, v{Z+4}\ns_waitcnt lgkmcnt(0)")
        s.pk("add", D+8, D+8, D+10); s.pk("add", D+12, D+12, D+14)
        s.rnd1(Z+6, Z+6)
        a(f"v_rcp_f32 v{Z+6}, v{Z+6}")
        s.pk("add", D, D, D+8); s.pk("add", D, D, D+12)
        s.pk("fma", D, C1, Z+4, D, mod="op_sel_hi:[1,0,1]")
        s.pk("fma", D, D, Z+6, C2, mod="op_sel_hi:[1,0,1]")
        a(f"v_max_f32 v{D}, 0, v{D}\nv_max_f32 v{D+1}, 0, v{D+1}")
        s.pk("mul", D, D, D)
        a(f"v_cvt_pk_bf16_f32 v{D+2}, v{D}, v{D+1}")
        s.frag_pair(F0, D+2)
        AD = 40
        s.cy("F", 6)
        s.gemv4(WB, F0, AC)
        s.gemv4(WC, F0, AD, ts=(0,))
        def cpart(A_, ct):
            for k in range(4): a(f"v_cndmask_b32 v{A_+k}, v{A_+k}, v{A_+4*ct+k}, s[{48+2*ct}:{49+2*ct}]")
        if s.o.get("f2", 0) == 0:
            for ct in range(4):
                s.mfma(AD+4*ct, WC+16+4*ct, F0+4, AD+4*ct)
                if ct < 3: cpart(AC, ct+1)
        else:
            s.gemv4(WC, F0, AD, ts=(1,))
            s.compact4(AC)
        a(f"v_and_or_b32 v{AC+3}, v{AC+3}, s63, v{vT8}")
        a(f"""s_mov_b64 exec, s[58:59]
        global_store_dwordx4 v216, v[{AC}:{AC+3}], s[44:45] sc1""")
        s.cy("F", 7)
        s.compact4(AD)
        a(f"v_and_or_b32 v{AD+3}, v{AD+3}, s63, v{vT8}")
        a(f"global_store_dwordx4 v219, v[{AD}:{AD+3}], s[44:45] sc1")
        s.stamp(10); s.cy("F", 8)
        a("s_branch L_end")
        a(f"""L_F_spare:
        s_cmp_lg_u32 s2, {248 + LX}
        s_cbranch_scc1 L_end
        s_cmp_lg_u32 s3, 0
        s_cbranch_scc1 L_end
        v_lshlrev_b32 v20, 8, v1
        v_add_u32 v20, {H4}, v20
        v_and_b32 v21, 31, v1
        v_lshlrev_b32 v21, 8, v21
        v_add_u32 v21, {ML}, v21""")
        s.poll(["s_sleep 8"] + [f"global_load_dword v{D+k}, v20, s[44:45] offset:{12+16*k} sc1" for k in range(4)] + [f"global_load_dwordx4 v[{D+4}:{D+7}], v21, s[44:45] sc1"],
               list(range(D, D+8)), vT8, "0xff", 14, 15)
        a(f"""s_add_u32 s6, s48, 1
        v_mov_b32 v20, s6
        v_mov_b32 v21, {EPOCH}
        s_mov_b64 exec, 1
        global_store_dword v21, v20, s[44:45] sc1
        s_branch L_end""")
        a("@BEGIN W")
        xl = f"global_load_dwordx4 v[20:23], v14, s[16:17] {s.o.get('smallf', '')}\nglobal_load_dwordx2 v[16:17], v13, s[16:17] {s.o.get('smallf', '')}"
        if e3:
            a(".p2align 6\nL_W:"); s.lanes(False); a(tlanes)
        else: a("L_W:")
        a(f"""v_lshl_add_u32 v8, v4, 13, v6
        s_lshl_b32 s9, s3, 19
        s_lshl_b32 s6, s4, 10
        s_add_u32 s9, s9, s6
        s_lshl_b32 s6, s5, 7
        s_add_u32 s9, s9, s6
        s_and_b32 s6, s3, 3
        s_lshl_b32 s6, s6, 10
        v_lshl_add_u32 v14, v1, 4, s6
        s_waitcnt lgkmcnt(0)
        {"" if s.o.get("late_ep") else ep}
        {"" if s.o.get("late_x") else xl}
        s_add_u32 s12, s22, s9
        s_addc_u32 s13, s23, 0""")
        s.stamp(1)
        n3 = s.o.get("pfq3", 0)
        if n3:
            a(f"""s_cmp_ge_u32 s3, {n3}
            s_cbranch_scc1 L_W_pfq
            s_mul_i32 s6, s5, {n3}
            s_add_u32 s6, s6, s3
            s_lshl_b32 s6, s6, 16
            s_lshl_b32 s7, s4, 10
            s_add_u32 s6, s6, s7
            s_add_u32 s6, s6, {(512 - 64*n3)*8192 + 384}
            v_lshrrev_b32 v24, 3, v1
            v_lshlrev_b32 v24, 13, v24
            v_and_b32 v25, 7, v1
            v_lshl_add_u32 v24, v25, 4, v24
            v_add_u32 v24, s6, v24
            global_load_dwordx4 v[240:243], v24, s[22:23] nt
            L_W_pfq:""")
        if s.o.get("w_split"):
            s.dma128(8, 15, 12, 8192, ts=(0,))
            a("s_waitcnt vmcnt(4)\ns_add_u32 m0, m0, 0x1000")
            s.dma128(8, 15, 12, 8192, ts=(1,))
        elif s.o.get("late_x"):
            s.dma128(8, 15, 12, 8192, ts=(0,))
            a(xl + "\ns_add_u32 m0, m0, 0x1000")
            s.dma128(8, 15, 12, 8192, ts=(1,))
        else:
            s.dma128(8, 15, 12, 8192)
        a("@SPLIT W")
        s.t_common([(24, 8), (44, 3)])
        a(f"s_waitcnt vmcnt({4 if s.o.get('late_x') else 8})")
        if s.o.get("late_ep"): a(ep)
        for k in range(4): s.unpack(40+2*k, 41+2*k, 20+k)
        a("v_readfirstlane_b32 s6, v40")
        for k in range(8): a(f"v_subrev_f32 v{40+k}, s6, v{40+k}")
        a("v_add_f32 v48, v40, v41\nv_mul_f32 v49, v40, v40\nv_fmac_f32 v49, v41, v41")
        for k in range(2, 8): a(f"v_add_f32 v48, v48, v{40+k}\nv_fmac_f32 v49, v{40+k}, v{40+k}")
        s.wave_sum2(48, 49, 50)
        a(f"""v_readlane_b32 s7, v48, 0
        v_readlane_b32 s8, v48, 16
        v_mov_b32 v50, {f32(1/512)}
        v_mul_f32 v48, s7, v50
        v_mul_f32 v49, s8, v50
        v_fma_f32 v49, -v48, v48, v49
        v_add_f32 v48, s6, v48""")
        s.ln_finish(48, 49)
        a(f"""s_and_b32 s6, s3, 3
        s_lshl_b32 s6, s6, 3
        s_add_u32 s6, s6, {SST}
        v_mov_b32 v50, s6
        ds_write_b64 v50, v[48:49]
        v_lshlrev_b32 v50, 3, v11
        v_add_u32 v50, {SST}, v50
        s_waitcnt lgkmcnt(0)
        s_barrier
        ds_read_b64 v[48:49], v50""")
        s.tags()
        s.unpack(32, 33, 16); s.unpack(34, 35, 17)
        a(f"""s_lshl_b32 s6, s3, 12
        s_add_u32 s6, s6, {HM}
        v_lshl_add_u32 v13, v11, 8, s6
        v_lshl_add_u32 v13, v10, 2, v13
        s_lshl_b32 s6, s4, 13
        s_lshl_b32 s7, s5, 8
        s_add_u32 s6, s6, s7
        s_lshl_b32 s7, s3, 11
        s_add_u32 s6, s6, s7
        s_add_u32 s6, s6, {H2A}
        v_lshl_add_u32 v56, v1, 2, s6
        v_add_u32 v57, {ALT}, v56
        s_waitcnt lgkmcnt(0)""")
        for k in range(4): a(f"v_sub_f32 v{32+k}, v{32+k}, v48")
        s.rnd2(32, 33, 36); s.rnd2(34, 35, 37)
        for k in range(4): a(f"v_mul_f32 v{32+k}, v{32+k}, v49")
        s.rnd2(32, 33, 36); s.rnd2(34, 35, 37)
        a("s_waitcnt vmcnt(0)")
        s.stamp(2)
        s.read128(WA, 0)
        s.poll([f"global_load_dwordx4 v[{D+4*p}:{D+4*p+3}], v13, s[44:45] offset:{1024*p} sc1" for p in range(4)],
               list(range(D, D+16)), vT8, "3", 14, 15)
        s.stamp(4)
        for k in range(16): a(f"v_and_b32 v{D+k}, -4, v{D+k}")
        for o in (0, 2, 8, 10): s.pk("add", D+o, D+o, D+o+4)
        s.rnd2(D, D+1, D+4); s.rnd2(D+2, D+3, D+5); s.rnd2(D+8, D+9, D+6); s.rnd2(D+10, D+11, D+7)
        for k in range(4): a(f"v_add_f32 v{D+8+k}, 1.0, v{D+8+k}")
        s.rnd2(D+8, D+9, D+6); s.rnd2(D+10, D+11, D+7)
        s.pk("mul", 32, 32, D+8); s.pk("mul", 34, 34, D+10)
        s.rnd2(32, 33, 36); s.rnd2(34, 35, 37)
        s.pk("add", 32, 32, D); s.pk("add", 34, 34, D+2)
        a("v_cvt_pk_bf16_f32 v16, v32, v33\nv_cvt_pk_bf16_f32 v17, v34, v35")
        s.frag_quad(F0, 16, 17)
        a("s_waitcnt lgkmcnt(0)")
        s.gemv4(WA, F0, AC)
        s.finish(AC, R, "L_W_q3")
        s.bf16_tagged(R, vTX)
        a(f"""global_store_dword v56, v{R}, s[44:45]
        global_store_dword v57, v{R}, s[44:45] sc1
        L_W_q3:""")
        s.stamp(5)
        a(f"""v_lshlrev_b32 v8, 13, v7
        v_lshl_add_u32 v8, v9, 12, v8
        v_add_u32 v8, v8, v6
        s_lshl_b32 s6, s4, 19
        s_lshl_b32 s7, s3, 16
        s_add_u32 s6, s6, s7
        s_lshl_b32 s7, s5, 7
        s_add_u32 s6, s6, s7
        s_add_u32 s10, s24, s6
        s_addc_u32 s11, s25, 0
        s_sub_u32 s10, s10, 1024
        s_subb_u32 s11, s11, 0
        s_add_u32 m0, s14, 8192
        s_barrier""")
        s.trigger(s.o.get("wo_trig"))
        n3 = s.o.get("pfo", 0)
        if n3:
            a(f"""s_cmp_ge_u32 s3, {n3}
            s_cbranch_scc1 L_W_pf
            s_mul_i32 s6, s5, {n3}
            s_add_u32 s6, s6, s3
            s_lshl_b32 s6, s6, 13
            s_lshl_b32 s7, s4, 19
            s_add_u32 s6, s6, s7
            s_add_u32 s6, s6, {(512 - 64*n3)*1024 + 384}
            v_lshrrev_b32 v20, 3, v1
            v_lshlrev_b32 v20, 10, v20
            v_and_b32 v21, 7, v1
            v_lshl_add_u32 v20, v21, 4, v20
            v_add_u32 v20, s6, v20
            global_load_dwordx4 v[240:243], v20, s[24:25] nt
            L_W_pf:""")
        s.dma128(8, 15, 10, 1024, rowf=lambda q4, t: 1 + 32*(q4 & 1) + (q4 >> 1) + 2*t, win=s.o.get('wwin', 0))
        a(f"""v_lshlrev_b32 v24, 13, v11
        v_lshl_add_u32 v24, v10, 2, v24
        s_lshl_b32 s6, s4, 15
        s_lshl_b32 s7, s3, 8
        s_add_u32 s6, s6, s7
        s_add_u32 s6, s6, {H3A + 4096}
        v_add_u32 v24, s6, v24
        s_lshl_b32 s6, s4, 11
        s_lshr_b32 s7, s3, 1
        s_lshl_b32 s7, s7, 4
        s_add_u32 s6, s6, s7
        s_add_u32 s6, s6, {ML3A}
        v_lshl_add_u32 v25, v2, 7, s6
        v_mov_b32 v58, 0xff
        v_cndmask_b32 v58, 0, v58, s[54:55]
        s_lshl_b32 s6, s3, 14
        v_lshl_add_u32 v19, v1, 2, s6
        s_lshl_b32 s6, s5, 11
        s_lshl_b32 s7, s4, 8
        s_add_u32 s6, s6, s7
        s_add_u32 s6, s6, {H4}
        v_add_u32 v19, s6, v19""")
        P = 224
        h3 = [(f"global_load_dwordx4 v[{P+4*g}:{P+4*g+3}], v@A, s[44:45] offset:{2048*g-4096} sc1", [P+4*g], list(range(P+4*g, P+4*g+4))) for g in range(4)]
        if s.o.get("prew"):
            a(f"v_xor_b32 v220, 0x80, v{vT8}\nv_mov_b32 v221, v220\nv_mov_b32 v222, v220\nv_mov_b32 v223, v220")
            a(f"s_cmp_lg_u32 s3, 0\ns_cbranch_scc1 L_W_pw\nglobal_store_dwordx4 v19, v[220:223], s[44:45] sc1\nL_W_pw:")

        mrg = s.o.get("mrg", 0)
        if mrg:
            ml = f"global_load_dwordx4 v[{D}:{D+3}], v25, s[44:45] sc1"
            def mlchk():
                s.tagacc(14, list(range(D, D+4)), vT8)
                a("v_and_b32 v14, 0xff, v14\nv_cmp_eq_u32 vcc, 0, v14\ns_and_b32 s67, vcc_lo, 0xffff")
            def count(lab):
                a(f"s_add_u32 s66, s66, 1\ns_cmp_ge_u32 s66, 400\ns_cbranch_scc1 {lab}_x\n{lab}_y:")
                s.ool.extend([f"{lab}_x:", f"s_cmp_gt_u32 s66, {LIMIT}", "s_cbranch_scc1 L_end", f"v_or_b32 v24, {ALT}, v24", f"v_or_b32 v25, {ALT}, v25", f"s_branch {lab}_y"])
            a(f"s_mov_b64 exec, 0xffff\n{ml}\ns_mov_b64 exec, -1\ns_waitcnt vmcnt(1)")
            s.read128(WB, 8192)
            s.stamp(6)
            a("s_mov_b32 s66, 0\ns_branch L_W_a1\nL_W_a0:")
            count("L_W_ca")
            a(f"s_sleep 1\ns_mov_b64 exec, 0xffff\n{ml}\ns_mov_b64 exec, -1\nL_W_a1:\ns_waitcnt vmcnt(0)")
            mlchk()
            a(f"s_bcnt1_i32_b32 s67, s67\ns_cmp_lt_u32 s67, {mrg}\ns_cbranch_scc1 L_W_a0")
            for k in range(4): a(f"s_mov_b64 s[{6+2*k}:{7+2*k}], -1")
            a("s_branch L_W_b1\nL_W_b0:\ns_waitcnt vmcnt(0)")
            for k, (l, _, rf) in enumerate(h3):
                a(f"v_cmp_ne_u32_sdwa s[{6+2*k}:{7+2*k}], v{rf[3]}, v{vT8} src0_sel:BYTE_0 src1_sel:BYTE_0")
            count("L_W_cb")
            a(f"L_W_b1:\ns_mov_b64 exec, 0xffff\n{ml}")
            for k, (l, _, rf) in enumerate(h3):
                a(f"s_cmp_lg_u64 s[{6+2*k}:{7+2*k}], 0\ns_cselect_b64 exec, -1, 0")
                a(l.replace("@A", "24"))
            a("s_mov_b64 exec, -1\ns_waitcnt vmcnt(4)")
            mlchk()
            a("s_cmp_lg_u32 s67, 0xffff\ns_cbranch_scc1 L_W_b0")
        else:
            a("s_waitcnt vmcnt(0)")
            s.read128(WB, 8192)
            s.stamp(6)
            a("s_mov_b64 exec, 0xffff")
            s.poll([f"s_sleep {s.o.get('mlsleep', 1)}", f"global_load_dwordx4 v[{D}:{D+3}], v25, s[44:45] sc1"], list(range(D, D+4)), vT8, "0xff", 14, 15, alt_addrs=(25,), thr=300)
            a("s_mov_b64 exec, -1")
            for l, _, _2 in h3: a(l.replace("@A", "24"))
        a(f"v_and_b32 v{D}, s62, v{D}\nv_and_b32 v{D+1}, s63, v{D+1}")
        s.dpp("v_max_f32", D+2, D, D, "quad_perm:[1,0,3,2]")
        s.dpp("v_max_f32", D+2, D+2, D+2, "quad_perm:[2,3,0,1]")
        a(f"""v_sub_f32 v{D}, v{D}, v{D+2}
        v_mul_f32 v{D}, s64, v{D}
        v_exp_f32 v{D}, v{D}
        v_mul_f32 v{D+1}, v{D+1}, v{D}""")
        s.dpp("v_add_f32", D+1, D+1, D+1, "quad_perm:[1,0,3,2]")
        s.dpp("v_add_f32", D+1, D+1, D+1, "quad_perm:[2,3,0,1]")
        a(f"""v_rcp_f32 v{D+1}, v{D+1}
        v_mul_f32 v{D}, v{D}, v{D+1}
        v_mov_b32 v{D+1}, v{D}
        v_permlane16_swap_b32 v{D}, v{D+1}
        v_mov_b32 v{D+1}, v{D}
        v_permlane32_swap_b32 v{D}, v{D+1}""")
        for g in range(4): s.dpp("v_mov_b32", 32+2*g, D, None, f"quad_perm:[{g},{g},{g},{g}]")
        a("s_waitcnt lgkmcnt(0)")
        if s.o.get("dprio"): a("s_setprio 3")
        s.stamp(3)
        s.fpoll([(l.replace("@A", "24"), rf[3]) for l, _, rf in h3], vT8, s.o.get("sdepth3", 0), alt=24, thr=512, first_issued=True)
        a("L_W_h3:")
        for g in range(4): a(f"v_and_b32 v{P+4*g+3}, s63, v{P+4*g+3}")
        s.stamp(7); s.cy("W", 0)
        for o in (0, 2): s.pk("mul", D+o, P+o, 32, mod="op_sel_hi:[1,0]")
        for g in range(1, 4):
            for o in (0, 2): s.pk("fma", D+o, P+4*g+o, 32+2*g, D+o, mod="op_sel_hi:[1,0,1]")
        a(f"v_cvt_pk_bf16_f32 v16, v{D}, v{D+1}\nv_cvt_pk_bf16_f32 v17, v{D+2}, v{D+3}")
        s.frag_quad(F0, 16, 17)
        s.cy("W", 1)
        if s.o.get("dprio"): a("s_setprio 0")
        s.gemv4(WB, F0, AC)
        s.cy("W", 2)
        if s.o.get("lane3"):
            s.tagacc(14, list(range(P, P+16)), vT8)
            a("v_and_b32 v14, 0xff, v14\nv_cmp_ne_u32 vcc, 0, v14\ns_cbranch_vccnz L_W_slow")
        if s.o.get("wb"):
            s.ool += ["L_W_wb:", "s_cmp_lg_u32 s3, 4", "s_cbranch_scc1 L_end", "s_cmp_lg_u32 s5, 0", "s_cbranch_scc1 L_end",
                      f"s_sleep {s.o['wb']}", "buffer_wbl2 sc1", "s_waitcnt vmcnt(0)", "s_branch L_end"]
        s.finish(AC, R, "L_W_wb" if s.o.get("wb") else "L_end")
        s.cy("W", 3)
        a(f"v_bfi_b32 v{R}, v58, v{vT8}, v{R}")
        a(f"global_store_dword v19, v{R}, s[44:45] sc1")
        s.stamp(8); s.cy("W", 4)

    def build(s):
        s.prologue()
        pro = s.L; s.L = []
        ic = pro.index("@COOP")
        pro[ic:ic+1] = ["s_cmp_ge_u32 s2, 224", "s_cselect_b32 s6, 0x100, 0", "v_xor_b32 v0, s6, v0"] if (s.o.get("coop") and not s.o.get("early3")) else []
        s.path_A(); A = s.L; s.L = []
        s.path_T(); T = s.L
        iF, iW, iWs = T.index("@SPLIT F"), T.index("@BEGIN W"), T.index("@SPLIT W")
        iA = A.index("@SPLIT A")
        if s.o.get("heads") == 2:
            s.L = pro + A[:iA] + ["s_branch L_A_body"] + T[:iF] + ["s_branch L_F_body"] + T[iW+1:iWs] + ["s_branch L_W_body", "L_A_body:"] + A[iA+1:] \
                  + ["L_F_body:"] + T[iF+1:iW] + ["L_W_body:"] + T[iWs+1:]
        elif s.o.get("heads"):
            assert pro[-2:] == ["s_cmp_ge_u32 s5, 16", "s_cbranch_scc1 L_T"]
            s.L = pro[:-2] + ["s_cmp_lt_u32 s5, 16", "s_cbranch_scc1 L_A"] + T[:iF] + ["s_branch L_F_body"] + T[iW+1:iWs] + ["s_branch L_W_body", "L_A:"] + A \
                  + ["L_F_body:"] + T[iF+1:iW] + ["L_W_body:"] + T[iWs+1:]
        else:
            s.L = pro + A + T
        s.L = [x for x in s.L if not x.startswith("@")]
        s.a("s_branch L_end")
        for l in s.ool: s.a(l)
        s.a("L_end:")
        s.stamp(11)
        s.dump_stamps()
        s.a("L_exit:\ns_endpgm")
        if s.o.get("cpf") == "1":
            k = s.L.index("L_k0:"); del s.L[k+1]
        if s.o.get("cpf") in ("0", "1", "0F", "0A"): s.a(".fill (16640 - (. - " + NAME + "_kernel)) / 4, 4, 0xbf810000")
        if s.o.get("hfl") is not None:
            s.L = [l[:-3] + s.o["hfl"] if ((l.startswith("global_load_dwordx4 v[240:243]") or "v9, s[22:23]" in l or "v9, s[32:33]" in l) and l.endswith(" nt")) else l for l in s.L]
        if not s.stamps: s.L = ["s_endpgm" if l == "s_branch L_end" else l for l in s.L]
        body = "\n".join(("" if l.endswith(":") else "    ") + l for l in hz.fix(s.L))
        hdr = open("cdna_kernels/" + NAME + ".s.ref").read().split("; Override")[0]
        k = NAME + "_kernel"
        return f"""{hdr}; Generated by my own generator script (dev/gen.py). One fused launch, 256 workgroups x 8 waves, one per CU.
;   i <  16  "A": attention over 512 keys of (batch i>>2, kv head x); wave 0 later sums the FFN partials of 16 outputs
;   i 24..31 "F": mod = silu(c) @ w_mod (64 columns), later LN2 + FFN for 64 hidden units x 2 batches
; copy (fast when both sides share an L2) and a write-through copy the reader falls back to under any other placement.
; @launch grid=(256,1,1) block=(512,1,1) lds={LDS_BYTES}
.amdgcn_target "amdgcn-amd-amdhsa--gfx950"
.text
.globl {k}
.p2align 8
.type {k},@function
{k}:
{body}
.section .rodata,"a"
.p2align 6
.amdhsa_kernel {k}
  .amdhsa_next_free_vgpr 256
  .amdhsa_next_free_sgpr 102
  .amdhsa_accum_offset 256
  .amdhsa_group_segment_fixed_size 0
  .amdhsa_kernarg_size 120
  .amdhsa_user_sgpr_count 2
  .amdhsa_user_sgpr_kernarg_segment_ptr 1
  .amdhsa_system_sgpr_workgroup_id_x 1
  .amdhsa_float_denorm_mode_32 3
  .amdhsa_float_denorm_mode_16_64 3
.end_amdhsa_kernel
"""
B = dict(va=2, vb=2, kwin=(2, 1), setup_at=1, w1_trig="q", h4_trig="m16", sdepth=0, sdepth6=0, slmini=8)
T = dict(B, two=4, late_at=0)
P = dict(B, pfq=2, pfm=1, pfo=4, kwin=(0, 16), setup_at=2)
B = dict(B, nspin=1)
B = dict(B, h4_trig="m8")
T6 = dict(B, two=6, late_at=0)
L0 = dict(T6, lightx=0)
M = dict(L0, ml_first=1)
H = dict(M, h4_trig=None, pfm=1, pfo=4)
Q = dict(H, pfq3=4)
S = dict(Q, s2=1, late_at=1)
C = dict(Q, fl_wait=2, coop=1)
FW = dict(Q, fl_wait=2)
AA = dict(FW, alt_always=1)
E = dict(AA, early3=1)
MP = dict(E, ml_first=2, pf_grp=1, w1_trig="p8")
Z = dict(MP, w1_trig="p4", two=5)
Z6 = dict(Z, two=6)
PW = dict(Z6, w1_trig="p10", wo_trig="p1")
K3 = dict(PW, kvmap=3)
N = dict(K3, kwin=(0, 16), setup_at=4)
K32 = dict(K3, kwin=(3, 2), setup_at=2)
TR = dict(K32, wo_trig=None, w1_trig=None, pf_grp=-1)
D = dict(K32, wo_trig="m16", w1_trig="m16")
D40 = dict(D, va=4, vb=0, two=0)
KLT = dict(K32, linv=1, fe_touch=1)
C0 = dict(KLT, cpf="0")
X6 = dict(C0, kvmap=6, w1_trig="p6")
VN = dict(C0, vpf="nt")
LP = dict(C0, lperm=1)
LP4 = dict(LP, w1_trig="p4")
L4N = dict(LP4, wo_trig=None)
U = dict(L4N, w1_trig=None, pf_grp=-1)
PR = dict(L4N, pairs=1)
AP = dict(L4N, apf=6)
L53 = dict(L4N, late_at=3, two=5)
X = dict(L53, late_x=1)
Q6 = dict(X, pfq3=6)
FINAL = dict(Q6, pfo=6)
Q2 = dict(X, pfq3=2, pfo=2)
HF = dict(X, hfl="")
CO = dict(HF, coop=1, ffl="")
FINAL = HF
VARIANTS = {"final": FINAL}
for k in [v for v in VARIANTS if v[0] != "#"]: VARIANTS["L" + k] = dict(VARIANTS[k], leak=11)
if __name__ == "__main__":
    names = sys.argv[1:] or list(VARIANTS)
    for n in names:
        open(f"k_{n}.s", "w").write(G(opts=VARIANTS[n]).build())
        open(f"s_{n}.s", "w").write(G(stamps=True, opts=VARIANTS[n]).build())
    print(" ".join(f"s_{n}.s" for n in names))
    print(", ".join(f'"dev/s_{n}.s"' for n in names))
```
